```python
import torch

def _softmax(x, axis=-1):
    return torch.softmax(x, dim=axis)
def _gelu(x):
    return torch.nn.functional.gelu(x, approximate="tanh")
def _silu(x):
    return torch.nn.functional.silu(x)
def _sigmoid(x):
    return torch.sigmoid(x)
def _layernorm(x, axis=-1, eps=1e-5):
    m = x.mean(dim=axis, keepdim=True)
    v = x.var(dim=axis, keepdim=True, unbiased=False)
    return (x - m) / torch.sqrt(v + eps)
def _scatter_add(tgt, idx, src, axis=0):
    return tgt.clone().index_add_(axis, idx, src)
def _segment_sum(src, seg, n):
    out = torch.zeros((n,) + src.shape[1:], dtype=src.dtype)
    return out.index_add_(0, seg, src)
def _pad(x, pw):
    flat = tuple(v for pair in reversed(pw) for v in pair)
    return torch.nn.functional.pad(x, flat)

kernel_name = 'parallel_sum__sliding_block__dense_activation_relu__prompt'

def setup_inputs():

    _w = (lambda a: (lambda t: t.to(torch.bfloat16) if t.is_floating_point() else t)(torch.as_tensor(a)))
    def _A_setup():
        B, S, D = 1, 2048, 1024
        return {
            "x": _w((lambda *s: torch.randn(*s, dtype=torch.bfloat16) * 0.05)(B, S, D)),
            "wqkv": _w((lambda *s: torch.randn(*s, dtype=torch.bfloat16) * 0.05)(D, 3 * D)),
            "wo": _w((lambda *s: torch.randn(*s, dtype=torch.bfloat16) * 0.05)(D, D)),
        }
    _A_in = _A_setup()

    def _B_setup():
        B, S, D, Dff = 1, 2048, 1024, 3584
        return {
            "x": _w((lambda *s: torch.randn(*s, dtype=torch.bfloat16) * 0.05)(B, S, D)),
            "w1": _w((lambda *s: torch.randn(*s, dtype=torch.bfloat16) * 0.05)(D, Dff)),
            "w2": _w((lambda *s: torch.randn(*s, dtype=torch.bfloat16) * 0.05)(Dff, D)),
        }
    _B_in = _B_setup()

    return {
        "A_x": _A_in["x"],
        "A_wqkv": _A_in["wqkv"],
        "A_wo": _A_in["wo"],
        "B_x": _B_in["x"],
        "B_w1": _B_in["w1"],
        "B_w2": _B_in["w2"],
    }

def reference(A_x, A_wqkv, A_wo, B_x, B_w1, B_w2):
    def _A_ref(x, wqkv, wo):
        B, S, D = x.shape
        H = 32; Dh = D // H; W = 256
        qkv = (lambda x, *d: x.permute(*d))((x @ wqkv).reshape(B, S, 3, H, Dh), 2, 0, 3, 1, 4)
        q, k, v = qkv[0], qkv[1], qkv[2]
        scores = torch.einsum("bhqd,bhkd->bhqk", q, k) * (Dh ** -0.5)
        idx = torch.arange(S)
        mask = (idx[:, None] - idx[None, :] >= 0) & (idx[:, None] - idx[None, :] < W)
        scores = torch.where(mask[None, None], scores, -1e9)
        p = _softmax(scores, axis=-1)
        o = torch.einsum("bhqk,bhkd->bhqd", p, v)
        return (lambda x, *d: x.permute(*d))(o, 0, 2, 1, 3).reshape(B, S, D) @ wo

    def _B_ref(x, w1, w2):
        h = torch.einsum("bsd,df->bsf", x, w1)
        zero = torch.zeros_like(h)
        h = torch.maximum(h, zero)
        return torch.einsum("bsf,fd->bsd", h, w2)

    x = A_x
    xn = _layernorm(x, axis=-1)
    return x + _A_ref(xn, A_wqkv, A_wo) + _B_ref(xn, B_w1, B_w2)
```

```python
import re

TRANS = ("v_exp_f32", "v_log_f32", "v_rcp_f32", "v_rsq_f32", "v_sqrt_f32", "v_sin_f32", "v_cos_f32", "v_rcp_iflag_f32")

def regs_of(tok):
    tok = tok.strip()
    tok = tok.lstrip("-")
    m = re.fullmatch(r"abs\((.*)\)", tok) or re.fullmatch(r"\|(.*)\|", tok)
    if m: tok = m.group(1)
    m = re.fullmatch(r"([vas])(\d+)", tok)
    if m: return {(m.group(1), int(m.group(2)))}
    m = re.fullmatch(r"([vas])\[(\d+):(\d+)\]", tok)
    if m: return {(m.group(1), i) for i in range(int(m.group(2)), int(m.group(3)) + 1)}
    if tok in ("vcc", "vcc_lo", "vcc_hi"): return {("vcc", 0)}
    if tok in ("exec", "exec_lo", "exec_hi"): return {("exec", 0)}
    if tok == "m0": return {("m0", 0)}
    return set()

class Ins:
    __slots__ = ("text", "op", "kind", "w", "r", "ra", "rb", "rc", "passes", "label", "target", "ws", "data", "dpp", "lds_dma")
    def __init__(self, text):
        self.text = text
        t = text.split(";")[0].strip()
        self.label = None; self.target = None; self.w = set(); self.r = set()
        self.ra = self.rb = self.rc = set(); self.passes = 0; self.ws = 1; self.data = set(); self.dpp = False; self.lds_dma = False
        if not t or t.startswith("."):
            self.kind = "dir"; self.op = ""; self.ws = 0; return
        if t.endswith(":"):
            self.kind = "label"; self.op = ""; self.label = t[:-1]; self.ws = 0; return
        parts = t.split(None, 1)
        op = self.op = parts[0]
        rest = parts[1] if len(parts) > 1 else ""
        ops = [x.strip() for x in re.split(r",(?![^\[]*\])", rest)] if rest else []
        mods = ""
        if ops:
            last = ops[-1].split(None, 1)
            ops[-1] = last[0]
            mods = last[1] if len(last) > 1 else ""
        R = [regs_of(o) for o in ops]
        U = lambda l: set().union(*l) if l else set()
        if op.startswith("v_mfma"):
            self.kind = "mfma"; self.w = R[0]; self.ra, self.rb, self.rc = R[1], R[2], R[3]; self.r = U(R[1:])
            self.passes = 8 if "32x32" in op else 4
        elif op.startswith("v_"):
            self.kind = "valu"
            if "dpp" in op or "row_" in mods or "quad_perm" in mods: self.dpp = True
            if op.startswith("v_cmp"):
                self.w = R[0]; self.r = U(R[1:])
            elif op.startswith("v_permlane") and "swap" in op:
                self.w = U(R); self.r = U(R)
            elif op.startswith(("v_add_co", "v_sub_co", "v_addc_co", "v_subb_co")):
                self.w = R[0] | R[1]; self.r = U(R[2:])
            elif op == "v_nop":
                pass
            else:
                self.w = R[0]; self.r = U(R[1:])
                if op.startswith(("v_fmac", "v_dot2c", "v_writelane")) or self.dpp: self.r |= R[0]
                if op.startswith("v_cndmask") and len(ops) == 3: self.r |= {("vcc", 0)}
        elif op.startswith("ds_"):
            self.kind = "ds"
            if op.startswith(("ds_read", "ds_bpermute", "ds_permute", "ds_swizzle")) or "rtn" in op:
                self.w = R[0]; self.r = U(R[1:])
            else:
                self.r = U(R)
        elif op.startswith(("buffer_", "global_")):
            self.kind = "vmem"
            allm = (mods + " " + " ".join(ops)).split()
            if op in ("buffer_inv", "buffer_wbl2"):
                pass
            elif "lds" in allm or "load_lds" in op:
                self.lds_dma = True; self.r = U(R) | {("m0", 0)}
            elif "load" in op:
                self.w = R[0]; self.r = U(R[1:])
            elif "atomic" in op:
                self.r = U(R)
                if "sc0" in allm: self.w = R[0]
            else:
                self.r = U(R)
                if op.endswith(("x3", "x4")):
                    self.data = R[0] if op.startswith("buffer_") else R[1]
        elif op.startswith("s_"):
            self.kind = "salu"
            if op == "s_nop": self.ws = int(ops[0], 0) + 1
            elif op.startswith(("s_cbranch", "s_branch")): self.target = ops[0]
            elif op.startswith(("s_cmp", "s_waitcnt", "s_barrier", "s_endpgm", "s_sleep", "s_setprio", "s_bitcmp")): self.r = U(R)
            else:
                if R: self.w = R[0]; self.r = U(R[1:])
                if "saveexec" in op: self.w |= {("exec", 0)}
        else:
            raise ValueError("unknown instruction: " + text)

def need(p, c):
    n = 0
    vec = lambda s: {x for x in s if x[0] in "va" and x[0] != "vcc"}
    sc = lambda s: {x for x in s if x[0] in ("s", "vcc")}
    if p.kind == "valu":
        pw = vec(p.w)
        if c.kind == "mfma" and pw & c.r: n = max(n, 2)
        if c.kind == "valu":
            if p.op.replace("_e32", "").replace("_e64", "") in TRANS and pw & c.r: n = max(n, 1)
            if c.op.startswith("v_permlane") and pw & c.r: n = max(n, 2)
            if c.dpp and pw & c.r: n = max(n, 2)
            if c.op.startswith(("v_readlane", "v_readfirstlane")) and pw & c.r: n = max(n, 1)
            if sc(p.w) & c.r: n = max(n, 4 if c.op.startswith(("v_readlane", "v_writelane")) else 2)
            if p.op.startswith("v_dot") and pw & (c.r | c.w) and c.op != p.op: n = max(n, 3)
            if ("sdwa" in p.text or ("op_sel" in p.text and not p.op.startswith("v_pk"))) and pw & (c.r | c.w): n = max(n, 1)
        if c.kind == "vmem" and sc(p.w) & c.r: n = max(n, 5)
        if c.kind == "salu" and sc(p.w) & c.r: n = max(n, 1)
    if p.kind == "mfma":
        big = 12 if p.passes == 8 else 8
        if c.kind == "valu":
            if p.w & (c.r | c.w): n = max(n, big)
            if p.rc & c.w: n = max(n, 7 if p.passes == 8 else 3)
        elif c.kind in ("ds", "vmem"):
            if p.w & (c.r | c.w): n = max(n, big)
        elif c.kind == "mfma":
            if p.w & (c.ra | c.rb): n = max(n, big)
            if p.w & c.rc and not (p.w == c.rc and p.passes == c.passes): n = max(n, 10 if p.passes == 8 else 6)
            if p.w & c.w and not (p.w & c.rc): n = max(n, big)
    if p.kind == "salu":
        if ("m0", 0) in p.w and c.lds_dma: n = max(n, 1)
    if p.kind == "vmem" and p.data:
        if c.kind == "valu" and p.data & c.w: n = max(n, 2)
        elif c.kind in ("mfma", "ds", "vmem") and p.data & c.w: n = max(n, 1)
    return n

MAXWS = 12

class Asm:
    def __init__(self):
        self.L = []
    def __call__(self, text):
        for line in text.split("\n"):
            line = line.strip()
            if line: self.L.append(line)
    def label(self, name): self.L.append(name + ":")
    def raw(self): return "\n".join(self.L) + "\n"

def pad_hazards(lines, verbose=False):
    ins = [Ins(t) for t in lines]
    total = 0
    while True:
        lab = {x.label: i for i, x in enumerate(ins) if x.label}
        jumps = {}
        for i, x in enumerate(ins):
            if x.target is not None: jumps.setdefault(lab[x.target], []).append(i)
        def preds(i):
            out = []
            if i > 0 and ins[i-1].op not in ("s_branch", "s_endpgm"): out.append(i-1)
            out += jumps.get(i, [])
            return out
        fix = None
        for ci, c in enumerate(ins):
            if c.kind in ("dir", "label"): continue
            worst = 0
            stack = [(p, 0) for p in preds(ci)]
            seen = {}
            while stack:
                pi, d = stack.pop()
                if d >= MAXWS: continue
                if seen.get(pi, 99) <= d: continue
                seen[pi] = d
                p = ins[pi]
                if p.kind not in ("dir", "label"):
                    k = need(p, c)
                    if k > d: worst = max(worst, k - d)
                for q in preds(pi): stack.append((q, d + p.ws))
            if worst:
                fix = (ci, worst); break
        if fix is None: break
        ci, k = fix
        if verbose: print("pad", k, "before", ins[ci].text)
        ins.insert(ci, Ins(f"s_nop {k-1}"))
        total += 1
    return [x.text for x in ins], total

def pad_hazards_fast(lines, verbose=False):
    ins = [Ins(t) for t in lines]
    total = 0
    for rounds in range(20):
        lab = {x.label: i for i, x in enumerate(ins) if x.label}
        jumps = {}
        for i, x in enumerate(ins):
            if x.target is not None: jumps.setdefault(lab[x.target], []).append(i)
        extra = {}
        def preds(i):
            out = []
            if i > 0 and ins[i-1].op not in ("s_branch", "s_endpgm"): out.append(i-1)
            out += jumps.get(i, [])
            return out
        changed = False
        for ci, c in enumerate(ins):
            if c.kind in ("dir", "label"): continue
            worst = 0
            stack = [(p, 0) for p in preds(ci)]
            seen = {}
            while stack:
                pi, d = stack.pop()
                if d >= MAXWS: continue
                if seen.get(pi, 99) <= d: continue
                seen[pi] = d
                p = ins[pi]
                if p.kind not in ("dir", "label"):
                    k = need(p, c)
                    if k > d: worst = max(worst, k - d)
                for q in preds(pi): stack.append((q, d + p.ws + extra.get(pi, 0)))
            if worst:
                extra[ci] = worst; changed = True
                if verbose: print("pad", worst, "before", c.text)
        if not changed: break
        new = []
        for i, x in enumerate(ins):
            if i in extra:
                new.append(Ins(f"s_nop {extra[i]-1}")); total += 1
            new.append(x)
        ins = new
    return [x.text for x in ins], total

def kernel_header(a, name):
    a(".text"); a(f".globl {name}"); a(".p2align 8"); a(f".type {name},@function"); a.label(name)

def kernel_desc(name, vgpr, accum, sgpr=102):
    return f""".section .rodata,"a"
.p2align 6
.amdhsa_kernel {name}
  .amdhsa_next_free_vgpr {vgpr}
  .amdhsa_next_free_sgpr {sgpr}
  .amdhsa_accum_offset {accum}
  .amdhsa_group_segment_fixed_size 0
  .amdhsa_kernarg_size 72
  .amdhsa_user_sgpr_count 2
  .amdhsa_user_sgpr_kernarg_segment_ptr 1
  .amdhsa_system_sgpr_workgroup_id_x 1
.end_amdhsa_kernel
"""
```

```python
import sys, math
from asmlib import *

MB = 1 << 20
WS_XF, WS_A2, WS_B2, WS_KF, WS_VF, WS_QF = 0, 4*MB, 22*MB, 32*MB, 36*MB, 40*MB
WS_SIZE = 44*MB
QSCALE = (32 ** -0.5) * math.log2(math.e)
import struct
def f2u(f): return struct.unpack("<I", struct.pack("<f", f))[0]

def srd(a, d, lo, hi, nbytes):
    a(f"s_mov_b32 s{d}, s{lo}"); a(f"s_mov_b32 s{d+1}, s{hi}")
    a(f"s_mov_b32 s{d+2}, {nbytes}"); a(f"s_mov_b32 s{d+3}, 0x20000")

def wg_map(a, rb, hd, t0=None):
    a(f"s_lshr_b32 s{hd}, s2, 3")
    a(f"s_and_b32 s{rb}, s{hd}, 3")
    a(f"s_lshr_b32 s{hd}, s{hd}, 2")
    a(f"s_and_b32 s{t0}, s2, 1"); a(f"s_lshl_b32 s{t0}, s{t0}, 2"); a(f"s_add_u32 s{rb}, s{rb}, s{t0}")
    a(f"s_and_b32 s{t0}, s2, 6"); a(f"s_lshl_b32 s{t0}, s{t0}, 2"); a(f"s_add_u32 s{hd}, s{hd}, s{t0}")

def wave_allreduce(a, v, tmp, op):
    for mod in ("quad_perm:[1,0,3,2]", "quad_perm:[2,3,0,1]", "row_half_mirror", "row_mirror"):
        a(f"{op}_dpp v{v}, v{v}, v{v} {mod} row_mask:0xf bank_mask:0xf")
    a(f"v_mov_b32 v{tmp}, v{v}"); a(f"v_permlane16_swap_b32 v{v}, v{tmp}"); a(f"{op} v{v}, v{v}, v{tmp}")
    a(f"v_mov_b32 v{tmp}, v{v}"); a(f"v_permlane32_swap_b32 v{v}, v{tmp}"); a(f"{op} v{v}, v{v}, v{tmp}")

def rowgroup_reduce(a, v, tmp, op):
    a(f"v_mov_b32 v{tmp}, v{v}"); a(f"v_permlane16_swap_b32 v{v}, v{tmp}"); a(f"{op} v{v}, v{v}, v{tmp}")
    a(f"v_mov_b32 v{tmp}, v{v}"); a(f"v_permlane32_swap_b32 v{v}, v{tmp}"); a(f"{op} v{v}, v{v}, v{tmp}")

def round_bf16(a, v):
    a(f"v_cvt_pk_bf16_f32 v{v}, v{v}, v{v}"); a(f"v_lshlrev_b32 v{v}, 16, v{v}")

def gen_prep():
    a = Asm(); kernel_header(a, "prep_kernel")
    a("s_cmp_ge_u32 s2, 256"); a("s_cbranch_scc1 Lprep_end")
    a("s_load_dwordx2 s[4:5], s[0:1], 0")
    a("s_load_dwordx2 s[6:7], s[0:1], 16")
    a("s_load_dwordx2 s[8:9], s[0:1], 40")
    a("s_load_dwordx2 s[10:11], s[0:1], 64")
    a("v_lshrrev_b32 v1, 6, v0"); a("v_readfirstlane_b32 s3, v1")
    a("v_and_b32 v1, 63, v0")
    a("v_lshlrev_b32 v2, 4, v1")
    wg_map(a, 30, 31, 32)
    a("s_waitcnt lgkmcnt(0)")
    srd(a, 12, 4, 5, 2048*2048)
    srd(a, 16, 10, 11, WS_SIZE)
    srd(a, 24, 8, 9, 3584*2048)
    a("s_cmp_eq_u32 s3, 3")
    a("s_cselect_b32 s20, s6, s8"); a("s_cselect_b32 s21, s7, s9")
    a(f"s_cselect_b32 s22, {1024*2048}, s26"); a("s_mov_b32 s23, 0x20000")
    a("s_lshl_b32 s33, s2, 3"); a("s_lshl_b32 s34, s3, 1"); a("s_add_u32 s33, s33, s34"); a("s_lshl_b32 s33, s33, 11")
    for r in range(2):
        for h in range(2):
            b = 8 + r*8 + h*4
            a(f"buffer_load_dwordx4 v[{b}:{b+3}], v2, s[12:15], s33 offen offset:{r*2048 + h*1024}")
    a("v_lshrrev_b32 v4, 4, v1"); a("v_and_b32 v5, 15, v1")
    a("v_lshlrev_b32 v3, 13, v4"); a("v_lshl_add_u32 v3, v5, 4, v3")
    a("s_lshl_b32 s35, s30, 8")
    a("v_add_u32 v3, s35, v3")
    a("s_mul_i32 s36, s31, 112"); a("s_lshl_b32 s37, s3, 5"); a("s_add_u32 s36, s36, s37")
    a("s_lshl_b32 s37, s31, 5"); a("s_cmp_eq_u32 s3, 3"); a("s_cselect_b32 s36, s37, s36")
    a("s_lshl_b32 s36, s36, 11")
    RAW = 64
    for e in range(8):
        off = (16*(e >> 2) + (e & 3))*2048
        a(f"s_add_u32 s38, s36, {off}")
        a(f"buffer_load_dwordx4 v[{RAW+4*e}:{RAW+4*e+3}], v3, s[20:23], s38 offen")
    a("v_and_b32 v6, 1, v4"); a("v_lshlrev_b32 v6, 14, v6"); a("v_lshl_add_u32 v6, v5, 4, v6"); a("v_add_u32 v6, s35, v6")
    a("s_mul_i32 s39, s31, 112"); a("s_add_u32 s39, s39, 96"); a("s_lshl_b32 s39, s39, 11")
    RAW2 = 96
    a("s_cmp_lg_u32 s3, 0"); a("s_cbranch_scc1 Lprep_noh1")
    for e in range(8):
        a(f"s_add_u32 s38, s39, {e*2048}")
        a(f"buffer_load_dwordx4 v[{RAW2+4*e}:{RAW2+4*e+3}], v6, s[24:27], s38 offen")
    a.label("Lprep_noh1")
    a("s_waitcnt vmcnt(0)")
    F = 128
    for r in range(2):
        for d in range(8):
            src = 8 + r*8 + d
            a(f"v_lshlrev_b32 v{F+r*16+2*d}, 16, v{src}")
            a(f"v_and_b32 v{F+r*16+2*d+1}, 0xffff0000, v{src}")
    for r in range(2):
        s = 24 + r
        a(f"v_add_f32 v{s}, v{F+r*16}, v{F+r*16+1}")
        for k in range(2, 16): a(f"v_add_f32 v{s}, v{s}, v{F+r*16+k}")
    for r in range(2): wave_allreduce(a, 24+r, 28+r, "v_add_f32")
    for r in range(2):
        a(f"v_mul_f32 v{24+r}, {f2u(1/1024):#x}, v{24+r}")
        a(f"v_mov_b32 v{26+r}, 0")
        for k in range(16):
            a(f"v_sub_f32 v{30+(k&1)}, v{F+r*16+k}, v{24+r}")
            a(f"v_fmac_f32 v{26+r}, v{30+(k&1)}, v{30+(k&1)}")
    for r in range(2): wave_allreduce(a, 26+r, 28+r, "v_add_f32")
    for r in range(2):
        a(f"v_mul_f32 v{26+r}, {f2u(1/1024):#x}, v{26+r}")
        round_bf16(a, 26+r); a(f"v_add_f32 v{26+r}, {f2u(1e-5):#x}, v{26+r}"); round_bf16(a, 26+r)
        a(f"v_sqrt_f32 v{26+r}, v{26+r}"); round_bf16(a, 26+r); a(f"v_rcp_f32 v{26+r}, v{26+r}")
        round_bf16(a, 24+r)
        for d in range(8):
            x0 = F+r*16+2*d
            a(f"v_sub_f32 v{x0}, v{x0}, v{24+r}"); a(f"v_sub_f32 v{x0+1}, v{x0+1}, v{24+r}")
            a(f"v_cvt_pk_bf16_f32 v30, v{x0}, v{x0+1}")
            a(f"v_lshlrev_b32 v{x0}, 16, v30"); a(f"v_and_b32 v{x0+1}, 0xffff0000, v30")
            a(f"v_mul_f32 v{x0}, v{x0}, v{26+r}"); a(f"v_mul_f32 v{x0+1}, v{x0+1}, v{26+r}")
            a(f"v_cvt_pk_bf16_f32 v{8+r*8+d}, v{x0}, v{x0+1}")
    a("v_and_b32 v32, 7, v1")
    for r in range(2):
        a(f"s_add_u32 s40, s34, {r}")
        a(f"v_xor_b32 v33, s40, v32"); a("v_lshlrev_b32 v33, 4, v33"); a("v_lshl_add_u32 v33, v1, 7, v33")
        for h in range(2):
            b = 8 + r*8 + h*4
            a(f"ds_write_b128 v33, v[{b}:{b+3}] offset:{h*8192}")
    a("s_waitcnt lgkmcnt(0)"); a("s_barrier")
    a("v_lshrrev_b32 v34, 3, v1")
    a("v_xor_b32 v35, v34, v32"); a("v_lshlrev_b32 v35, 4, v35"); a("v_lshl_add_u32 v35, v34, 7, v35")
    a("s_lshl_b32 s40, s3, 12"); a("v_add_u32 v35, s40, v35")
    for j in range(4): a(f"ds_read_b128 v[{40+4*j}:{43+4*j}], v35 offset:{j*1024}")
    a("v_lshlrev_b32 v36, 8, v34"); a("v_lshl_add_u32 v36, v32, 4, v36")
    a("s_lshr_b32 s40, s2, 1"); a("s_lshl_b32 s40, s40, 15"); a("s_and_b32 s41, s2, 1"); a("s_lshl_b32 s41, s41, 7")
    a("s_add_u32 s40, s40, s41"); a("s_lshl_b32 s41, s3, 13"); a("s_add_u32 s40, s40, s41"); a(f"s_add_u32 s40, s40, {WS_XF}")
    a("s_add_u32 s41, s40, 4096")
    a("s_waitcnt lgkmcnt(0)")
    for j in range(4):
        a(f"buffer_store_dwordx4 v[{40+4*j}:{43+4*j}], v36, s[16:19], s{40 + j//2} offen offset:{(j&1)*2048}")
    a("s_mov_b32 s42, 0x05040100"); a("s_mov_b32 s43, 0x07060302")
    def transpose_store(raw, out, sbase):
        for j in range(8):
            for q in range(4):
                a(f"v_perm_b32 v{out+4*j+q}, v{raw+4*(2*q+1)+(j>>1)}, v{raw+4*(2*q)+(j>>1)}, s{42+(j&1)}")
        a(f"s_add_u32 s{sbase+1}, s{sbase}, 4096")
        for j in range(8):
            a(f"buffer_store_dwordx4 v[{out+4*j}:{out+4*j+3}], v2, s[16:19], s{sbase + j//4} offen offset:{(j&3)*1024}")
    a("s_lshr_b32 s44, s31, 1"); a("s_mul_i32 s44, s44, 7")
    a("s_and_b32 s45, s31, 1"); a("s_lshl_b32 s46, s45, 2"); a("s_add_u32 s46, s46, s44"); a("s_add_u32 s46, s46, s3")
    a("s_add_u32 s47, s31, 112"); a("s_cmp_eq_u32 s3, 3"); a("s_cselect_b32 s46, s47, s46")
    a("s_mul_i32 s47, s30, 144"); a("s_add_u32 s46, s46, s47"); a("s_lshl_b32 s46, s46, 13"); a(f"s_add_u32 s48, s46, {WS_B2}")
    transpose_store(RAW, 160, 48)
    a("s_cmp_lg_u32 s3, 0"); a("s_cbranch_scc1 Lprep_end")
    a("s_add_u32 s44, s44, 3"); a("s_add_u32 s44, s44, s47"); a("s_lshl_b32 s44, s44, 13"); a(f"s_add_u32 s50, s44, {WS_B2}")
    a("s_cmp_eq_u32 s45, 0")
    a("s_cselect_b32 exec_lo, -1, 0"); a("s_cselect_b32 exec_hi, 0, -1")
    transpose_store(RAW2, 192, 50)
    a.label("Lprep_end")
    a("s_endpgm")
    return a, kernel_desc("prep_kernel", 256, 256)

NS = 4
STG = 28672
def acc(f, t): return (f*4 + t)*4
def vr(b, n=4): return f"v[{b}:{b+n-1}]"
def ar(b, n=4): return f"a[{b}:{b+n-1}]"
def Areg(slot, u, t): return slot*32 + (u*4 + t)*4
def Breg(set_, f): return 128 + set_*52 + f*4
VADDR = 208
VDMA = 226
VLANE16 = 233

def gemm1_setup(a):
    L = 250
    a(f"v_lshlrev_b32 v{VLANE16}, 4, v{L}")
    a(f"v_lshrrev_b32 v240, 2, v{L}"); a("s_lshl_b32 s40, s3, 4"); a("v_add_u32 v240, s40, v240")
    a("v_mul_u32_u24 v240, 6144, v240")
    a(f"v_lshrrev_b32 v241, 5, v{L}"); a("v_lshlrev_b32 v241, 1, v241"); a(f"v_and_b32 v242, 3, v{L}"); a("v_xor_b32 v241, v241, v242")
    a("v_lshl_add_u32 v240, v241, 4, v240")
    a("s_lshl_b32 s41, s31, 6"); a(f"v_add_u32 v{VDMA}, s41, v240")
    a(f"v_add_u32 v{VDMA+1}, 1024, v{VDMA}"); a(f"v_add_u32 v{VDMA+2}, 2048, v{VDMA}")
    a(f"v_lshrrev_b32 v240, 4, v{L}")
    a("v_add_u32 v241, s40, v240"); a("v_mul_u32_u24 v241, 7168, v241")
    a("s_mul_i32 s41, s31, 224"); a("s_and_b32 s42, s31, 1"); a("s_lshl_b32 s43, s42, 5"); a("s_sub_u32 s41, s41, s43")
    a("v_add_u32 v241, s41, v241")
    a(f"v_and_b32 v242, 1, v{L}"); a("v_lshl_add_u32 v241, v242, 4, v241")
    a(f"v_bfe_u32 v242, v{L}, 1, 3"); a("v_xor_b32 v242, v242, v240")
    for j in range(4):
        if j == 2: a("v_xor_b32 v242, 4, v242")
        a(f"v_lshl_add_u32 v{VDMA+3+j}, v242, 5, v241")
        if j: a(f"v_add_u32 v{VDMA+3+j}, {j*(4*7168-1024)}, v{VDMA+3+j}")
    a(f"v_lshrrev_b32 v240, 5, v{L}"); a("v_mul_u32_u24 v240, 7168, v240")
    a(f"v_and_b32 v241, 3, v{L}"); a("v_lshl_add_u32 v240, v241, 3, v240")
    a(f"v_bfe_u32 v241, v{L}, 4, 1")
    a(f"v_bfe_u32 v242, v{L}, 2, 2")
    a("v_lshl_add_u32 v243, v241, 3, v242")
    a("v_lshl_add_u32 v244, v243, 6, v240")
    a(f"v_lshl_add_u32 v{VADDR}, v241, 5, v244")
    a("v_xor_b32 v245, 1, v241"); a(f"v_lshl_add_u32 v{VADDR+1}, v245, 5, v244")
    a("v_lshl_add_u32 v244, v243, 8, v240"); a("v_add_u32 v244, 3072, v244")
    a("v_lshl_add_u32 v245, v241, 2, v242")
    for f in range(7):
        a(f"s_add_u32 s43, s42, {f}")
        a("v_xor_b32 v246, s43, v245"); a(f"v_lshl_add_u32 v{VADDR+2+f}, v246, 5, v244")
    for i in range(9): a(f"v_add_u32 v{VADDR+9+i}, {2*STG}, v{VADDR+i}")

def tr_reads(slot, u, set_):
    out = []
    base = (slot & 1)*STG + u*14336
    vs = VADDR + 9*(slot >> 1)
    for f in range(13):
        for h in range(2):
            d = Breg(set_, f) + 2*h
            if f < 6: va, off = vs + (f & 1), base + (f >> 1)*1024 + h*256
            else: va, off = vs + 2 + (f - 6), base + h*1024
            out.append(f"ds_read_b64_tr_b16 {ar(d,2)}, v{va} offset:{off}")
    return out
def dma_ops(slot):
    ops = []
    ops.append([f"s_add_u32 m0, s56, {slot*STG}"])
    for m in range(3): ops.append([f"buffer_load_dwordx4 v{VDMA+m}, s[8:11], s50 offen offset:{m*1024} lds"])
    ops[-1].append(f"s_add_u32 m0, s56, {slot*STG+3072}"); ops[-1].append(f"s_add_u32 s50, s50, {64*6144}")
    for j in range(4): ops.append([f"buffer_load_dwordx4 v{VDMA+3+j}, s[12:15], s51 offen offset:{j*1024} lds"])
    ops[-1].append(f"s_add_u32 s51, s51, {64*7168}")
    return ops
def a_ops(slot):
    ops = []
    for t in range(4):
        for u in range(2):
            ops.append([f"buffer_load_dwordx4 {ar(Areg(slot,u,t))}, v{VLANE16}, s[16:19], s{52+t} offen offset:{u*1024}"])
        ops[-1].append(f"s_add_u32 s{52+t}, s{52+t}, 2048")
    return ops
def mfmas(slot, u, set_):
    out = []
    for f in range(13):
        for t in range(4):
            c = vr(acc(f, t)); x = ar(Areg(slot, u, t)); w = ar(Breg(set_, f))
            if f in (4, 5): out.append(f"v_mfma_f32_16x16x32_bf16 {c}, {x}, {w}, {c}")
            else: out.append(f"v_mfma_f32_16x16x32_bf16 {c}, {w}, {x}, {c}")
    return out
def interleave(a, ms, reads, vm):
    pos = {}
    for i, r in enumerate(reads): pos.setdefault(int(i*44/len(reads)), []).append(r)
    used = set(pos)
    free = [g for g in range(len(ms)) if g not in used]
    n = len(vm)
    for i, grp in enumerate(vm):
        want = int((i+0.5)*len(ms)/n)
        g = min(free, key=lambda x: abs(x-want));
        free = [x for x in free if x > g]
        pos.setdefault(g, []).extend(grp)
    for i, m in enumerate(ms):
        a(m)
        for x in pos.get(i, []): a(x)

def gemm1_body(a, s_mod, load_a=True, load_dma=True, last=False, vm_wait=None):
    slot = s_mod % NS
    interleave(a, mfmas(slot, 0, 0), tr_reads(slot, 1, 1), a_ops((slot-1) % NS) if load_a else [])
    if not last:
        a(f"s_waitcnt vmcnt({vm_wait}) lgkmcnt(0)"); a("s_barrier")
        interleave(a, mfmas(slot, 1, 1), tr_reads((slot+1) % NS, 0, 0), dma_ops(slot) if load_dma else [])
        a("s_waitcnt lgkmcnt(0)")
    else:
        a("s_waitcnt lgkmcnt(0)")
        for m in mfmas(slot, 1, 1): a(m)

def gen_gemm1():
    a = Asm(); kernel_header(a, "gemm1_kernel")
    a("s_cmp_ge_u32 s2, 256"); a("s_cbranch_scc1 Lg1_end")
    a("s_load_dwordx2 s[4:5], s[0:1], 8")
    a("s_load_dwordx2 s[6:7], s[0:1], 32")
    a("s_load_dwordx2 s[20:21], s[0:1], 64")
    a("v_lshrrev_b32 v1, 6, v0"); a("v_readfirstlane_b32 s3, v1")
    a("v_and_b32 v250, 63, v0")
    wg_map(a, 30, 31, 32)
    gemm1_setup(a)
    a("s_waitcnt lgkmcnt(0)")
    srd(a, 8, 4, 5, 1024*6144); srd(a, 12, 6, 7, 1024*7168); srd(a, 16, 20, 21, WS_SIZE)
    a("s_mov_b32 s50, 0"); a("s_mov_b32 s51, 0"); a("s_mul_i32 s56, s3, 7168")
    a("s_lshl_b32 s40, s30, 4"); a("s_lshl_b32 s41, s3, 1")
    a("s_add_u32 s60, s40, s41"); a("s_add_u32 s61, s60, 1")
    a("s_add_u32 s62, s40, 14"); a("s_sub_u32 s62, s62, s41"); a("s_add_u32 s63, s62, 1")
    for t in range(4): a(f"s_lshl_b32 s{52+t}, s{60+t}, 15")
    for s in range(NS):
        for grp in dma_ops(s):
            for x in grp: a(x)
        if s < NS-1:
            for grp in a_ops(s):
                for x in grp: a(x)
    for i in range(208): a(f"v_mov_b32 v{i}, 0")
    a(f"s_waitcnt vmcnt({15*(NS-2)+7})"); a("s_barrier")
    for r in tr_reads(0, 0, 0): a(r)
    a("s_waitcnt lgkmcnt(0)")
    nloop = 16//NS - 1
    a(f"s_mov_b32 s57, {nloop}")
    a(".p2align 6")
    a.label("Lg1_loop")
    for s in range(NS): gemm1_body(a, s, vm_wait=15*(NS-2))
    a("s_sub_u32 s57, s57, 1"); a("s_cmp_lg_u32 s57, 0"); a("s_cbranch_scc1 Lg1_loop")
    for k in range(NS):
        s = 16 - NS + k
        la = (s + NS - 1) < 16
        w = 15*max(0, 15-(s+1))
        gemm1_body(a, s, load_a=la, load_dma=False, last=(s == 15), vm_wait=w)
    a(f"s_mov_b32 s40, {f2u(QSCALE):#x}")
    def pack(f0, t0, f1, t1, relu=False):
        d = acc(f0, t0); b = acc(f1, t1)
        a(f"v_cvt_pk_bf16_f32 v{d}, v{d}, v{d+1}"); a(f"v_cvt_pk_bf16_f32 v{d+1}, v{d+2}, v{d+3}")
        a(f"v_cvt_pk_bf16_f32 v{d+2}, v{b}, v{b+1}"); a(f"v_cvt_pk_bf16_f32 v{d+3}, v{b+2}, v{b+3}")
        if relu:
            for i in range(4): a(f"v_pk_max_i16 v{d+i}, v{d+i}, 0")
        return d
    a("s_lshl_b32 s41, s31, 17")
    for t in range(4):
        d = pack(2, t, 3, t)
        a(f"s_lshl_b32 s42, s{60+t}, 10"); a("s_add_u32 s42, s42, s41"); a(f"s_add_u32 s43, s42, {WS_KF}")
        a(f"buffer_store_dwordx4 {vr(d)}, v{VLANE16}, s[16:19], s43 offen")
        for f in range(2):
            for i in range(4): a(f"v_mul_f32 v{acc(f,t)+i}, s40, v{acc(f,t)+i}")
        d = pack(0, t, 1, t)
        a(f"s_add_u32 s43, s42, {WS_QF}")
        a(f"buffer_store_dwordx4 {vr(d)}, v{VLANE16}, s[16:19], s43 offen")
    for p in range(2):
        a(f"s_lshl_b32 s42, s{60+2*p}, 10"); a("s_add_u32 s42, s42, s41"); a(f"s_add_u32 s43, s42, {WS_VF}")
        for j in range(2):
            d = pack(4+j, 2*p, 4+j, 2*p+1)
            a(f"buffer_store_dwordx4 {vr(d)}, v{VLANE16}, s[16:19], s43 offen offset:{j*1024}")
    a("s_lshr_b32 s44, s31, 1"); a("s_mul_i32 s44, s44, 7"); a("s_and_b32 s45, s31, 1"); a("s_lshl_b32 s46, s45, 2"); a("s_add_u32 s46, s46, s44")
    a("s_lshl_b32 s46, s46, 12")
    a("s_add_u32 s44, s44, 3"); a("s_lshl_b32 s44, s44, 12"); a("s_lshl_b32 s45, s45, 9"); a("s_add_u32 s44, s44, s45")
    a("v_and_b32 v240, 15, v250"); a("v_lshlrev_b32 v240, 4, v240")
    a("v_bfe_u32 v241, v250, 4, 1"); a("v_lshl_add_u32 v240, v241, 10, v240")
    a("v_lshrrev_b32 v241, 5, v250"); a("v_lshl_add_u32 v240, v241, 8, v240")
    for p in range(2):
        a(f"s_lshr_b32 s42, s{60+2*p}, 2"); a(f"s_mul_i32 s42, s42, {144*4096}"); a(f"s_and_b32 s43, s{60+2*p}, 3"); a("s_lshl_b32 s43, s43, 10")
        a("s_add_u32 s42, s42, s43"); a(f"s_add_u32 s42, s42, {WS_A2}")
        for b in range(3):
            a(f"s_add_u32 s43, s42, s46");
            if b: a(f"s_add_u32 s43, s43, {b*4096}")
            for tt in range(2):
                d = pack(6+2*b, 2*p+tt, 7+2*b, 2*p+tt, relu=True)
                a(f"buffer_store_dwordx4 {vr(d)}, v{VLANE16}, s[16:19], s43 offen offset:{tt*1024}")
        d = pack(12, 2*p, 12, 2*p+1, relu=True)
        a(f"v_permlane16_swap_b32 v{d}, v{d+2}"); a(f"v_permlane16_swap_b32 v{d+1}, v{d+3}")
        a("s_add_u32 s43, s42, s44")
        a(f"buffer_store_dwordx4 {vr(d)}, v240, s[16:19], s43 offen")
    a.label("Lg1_end")
    a("s_endpgm")
    return a, kernel_desc("gemm1_kernel", 512, 256)

def gen_attn():
    a = Asm(); kernel_header(a, "attn_kernel")
    a("s_cmp_ge_u32 s2, 256"); a("s_cbranch_scc1 Lat_end")
    a("s_load_dwordx2 s[20:21], s[0:1], 64")
    a("v_lshrrev_b32 v1, 6, v0"); a("v_readfirstlane_b32 s3, v1")
    a("v_and_b32 v1, 63, v0"); a("v_lshlrev_b32 v2, 4, v1")
    wg_map(a, 30, 31, 32)
    a("s_waitcnt lgkmcnt(0)")
    srd(a, 16, 20, 21, WS_SIZE)
    a("s_lshl_b32 s40, s30, 4"); a("s_lshl_b32 s41, s3, 1")
    a("s_add_u32 s60, s40, s41"); a("s_add_u32 s61, s60, 1")
    a("s_add_u32 s62, s40, 14"); a("s_sub_u32 s62, s62, s41"); a("s_add_u32 s63, s62, 1")
    a("s_lshl_b32 s41, s31, 17")
    Q = 8
    for t in range(4):
        a(f"s_lshl_b32 s42, s{60+t}, 10"); a("s_add_u32 s42, s42, s41"); a(f"s_add_u32 s43, s42, {WS_QF}")
        a(f"buffer_load_dwordx4 {vr(Q+4*t)}, v2, s[16:19], s43 offen")
    a("s_lshl_b32 s42, s30, 14"); a("s_add_u32 s42, s42, s41"); a("s_lshl_b32 s43, s3, 12"); a("s_add_u32 s42, s42, s43")
    def copy(src_add, lds_base):
        a(f"s_add_u32 s44, s42, {src_add}"); a(f"s_add_u32 m0, s43, {lds_base}")
        for j in range(4): a(f"buffer_load_dwordx4 v2, s[16:19], s44 offen offset:{j*1024} lds")
    copy(WS_KF, 16384); copy(WS_VF, 32768+16384)
    a("s_cmp_eq_u32 s30, 0"); a("s_cbranch_scc1 Lat_noprev")
    copy(WS_KF-16384, 0); copy(WS_VF-16384, 32768)
    a.label("Lat_noprev")
    BL, BU, ONES = 24, 28, 32
    a("v_and_b32 v3, 15, v1"); a("v_lshrrev_b32 v4, 4, v1"); a("v_lshlrev_b32 v4, 2, v4")
    a(f"v_mov_b32 v5, {f2u(-1e30):#x}")
    for r in range(4):
        a(f"v_add_u32 v6, {r}, v4"); a("v_cmp_le_u32 vcc, v6, v3")
        a(f"v_cndmask_b32 v{BL+r}, v5, 0, vcc".replace("v5, 0, vcc", "v5, v7, vcc") if False else f"v_cndmask_b32_e64 v{BL+r}, v5, 0, vcc")
        a(f"v_cndmask_b32_e64 v{BU+r}, 0, v5, vcc")
        a(f"v_mov_b32 v{ONES+r}, 0x3f803f80")
    O = 40
    Lr = 72
    M = 88
    for i in range(48): a(f"v_mov_b32 v{O+i}, 0")
    for q in range(4): a(f"v_mov_b32 v{M+q}, v5")
    KT, VT, S, P, C, CD, T = 96, 104, 112, 128, 136, 144, 152
    a("s_waitcnt vmcnt(0)"); a("s_barrier")
    mf = "v_mfma_f32_16x16x32_bf16"
    def rdK():
        a(f"ds_read_b128 {vr(KT)}, v3"); a(f"ds_read_b128 {vr(KT+4)}, v3 offset:1024")
    def rdV():
        a(f"ds_read_b128 {vr(VT)}, v3 offset:32768"); a(f"ds_read_b128 {vr(VT+4)}, v3 offset:33792")
    KINDS = {"full": [(0,0,None),(0,1,None),(1,0,None),(1,1,None)],
             "causal": [(0,0,"L"),(1,0,None),(1,1,"L")],
             "upper": [(0,0,"U"),(0,1,None),(1,1,"U")]}
    def p1(pp, kind):
        rdK(); a("s_waitcnt lgkmcnt(0)")
        for (q, k, mt) in KINDS[kind]:
            c = "0" if mt is None else vr(BL if mt == "L" else BU)
            a(f"{mf} {vr(S+(q*2+k)*4)}, {vr(KT+4*k)}, {vr(Q+4*(2*pp+q))}, {c}")
        for (q, k, mt) in KINDS[kind]:
            s = S+(q*2+k)*4; m = M+2*pp+q
            a(f"v_max3_f32 v{m}, v{s}, v{s+1}, v{m}"); a(f"v_max3_f32 v{m}, v{s+2}, v{s+3}, v{m}")
    def p2(pp, kind):
        rdK(); rdV()
        if kind != "full":
            B = BL if kind == "causal" else BU
            for q in range(2):
                for r in range(4): a(f"v_add_f32 v{CD+4*q+r}, v{B+r}, v{C+4*q+r}")
        a("s_waitcnt lgkmcnt(0)")
        for (q, k, mt) in KINDS[kind]:
            c = vr(C+4*q) if mt is None else vr(CD+4*q)
            a(f"{mf} {vr(S+(q*2+k)*4)}, {vr(KT+4*k)}, {vr(Q+4*(2*pp+q))}, {c}")
        have = {(q, k) for (q, k, mt) in KINDS[kind]}
        for q in range(2):
            for k in range(2):
                s = S+(q*2+k)*4
                if (q, k) in have:
                    for r in range(4): a(f"v_exp_f32 v{s+r}, v{s+r}")
                    a(f"v_cvt_pk_bf16_f32 v{P+4*q+2*k}, v{s}, v{s+1}"); a(f"v_cvt_pk_bf16_f32 v{P+4*q+2*k+1}, v{s+2}, v{s+3}")
                else:
                    a(f"v_mov_b32 v{P+4*q+2*k}, 0"); a(f"v_mov_b32 v{P+4*q+2*k+1}, 0")
        for q in range(2):
            qq = 2*pp+q
            for j in range(2):
                o = vr(O+(qq*2+j)*4); a(f"{mf} {o}, {vr(VT+4*j)}, {vr(P+4*q)}, {o}")
            l = vr(Lr+4*qq); a(f"{mf} {l}, {vr(ONES)}, {vr(P+4*q)}, {l}")
    def loop(name, cnt_sgpr, body):
        a(f"s_mov_b32 s50, s{cnt_sgpr}")
        a("s_cmp_eq_u32 s50, 0"); a(f"s_cbranch_scc1 {name}_done")
        a.label(name)
        body(); a("v_add_u32 v3, 2048, v3")
        a("s_sub_u32 s50, s50, 1"); a("s_cmp_lg_u32 s50, 0"); a(f"s_cbranch_scc1 {name}")
        a.label(name + "_done")
    def phase(pp, ph):
        if pp == 0: a("s_mov_b32 s46, s3"); a("s_sub_u32 s47, 7, s3")
        else: a("s_sub_u32 s46, 7, s3"); a("s_mov_b32 s47, s3")
        def start():
            if ph == "A": a(f"v_add_u32 v3, {8*2048}, v2")
            else: a("s_lshl_b32 s48, s46, 11"); a("v_add_u32 v3, s48, v2")
        if ph == "B":
            for q in range(2): a(f"v_mov_b32 v{T+q}, v{M+2*pp+q}")
        start()
        if ph == "A":
            loop(f"Lat_{pp}{ph}1", 46, lambda: p1(pp, "full")); p1(pp, "causal")
        else:
            p1(pp, "upper"); a("v_add_u32 v3, 2048, v3"); loop(f"Lat_{pp}{ph}1", 47, lambda: p1(pp, "full"))
        for q in range(2):
            m = M+2*pp+q
            rowgroup_reduce(a, m, T+2, "v_max_f32")
            for r in range(4): a(f"v_sub_f32 v{C+4*q+r}, 0, v{m}")
            if ph == "B":
                a(f"v_sub_f32 v{T+q}, v{T+q}, v{m}"); a(f"v_exp_f32 v{T+q}, v{T+q}")
                qq = 2*pp+q
                for i in range(8): a(f"v_mul_f32 v{O+qq*8+i}, v{O+qq*8+i}, v{T+q}")
                for i in range(4): a(f"v_mul_f32 v{Lr+qq*4+i}, v{Lr+qq*4+i}, v{T+q}")
        start()
        if ph == "A":
            loop(f"Lat_{pp}{ph}2", 46, lambda: p2(pp, "full")); p2(pp, "causal")
        else:
            p2(pp, "upper"); a("v_add_u32 v3, 2048, v3"); loop(f"Lat_{pp}{ph}2", 47, lambda: p2(pp, "full"))
    phase(0, "A"); phase(1, "A")
    a("s_cmp_eq_u32 s30, 0"); a("s_cbranch_scc1 Lat_fin")
    phase(0, "B"); phase(1, "B")
    a.label("Lat_fin")
    a("s_add_u32 s44, s31, 112"); a("s_lshl_b32 s44, s44, 12")
    for qq in range(4):
        a(f"v_rcp_f32 v{T}, v{Lr+4*qq}")
        o = O+qq*8
        for i in range(8): a(f"v_mul_f32 v{o+i}, v{o+i}, v{T}")
        for i in range(4): a(f"v_cvt_pk_bf16_f32 v{o+i}, v{o+2*i}, v{o+2*i+1}")
        a(f"s_lshr_b32 s42, s{60+qq}, 2"); a(f"s_mul_i32 s42, s42, {144*4096}"); a(f"s_and_b32 s43, s{60+qq}, 3"); a("s_lshl_b32 s43, s43, 10")
        a("s_add_u32 s42, s42, s43"); a(f"s_add_u32 s42, s42, {WS_A2}"); a("s_add_u32 s42, s42, s44")
        a(f"buffer_store_dwordx4 {vr(o)}, v2, s[16:19], s42 offen")
    a.label("Lat_end")
    a("s_endpgm")
    return a, kernel_desc("attn_kernel", 256, 256)

def gen_gemm2():
    a = Asm(); kernel_header(a, "gemm2_kernel")
    R = 4
    a("s_cmp_ge_u32 s2, 256"); a("s_cbranch_scc1 Lg2_end")
    a("s_load_dwordx2 s[4:5], s[0:1], 0")
    a("s_load_dwordx2 s[6:7], s[0:1], 48")
    a("s_load_dwordx2 s[20:21], s[0:1], 64")
    a("v_lshrrev_b32 v1, 6, v0"); a("v_readfirstlane_b32 s3, v1")
    a("v_and_b32 v200, 63, v0"); a("v_lshlrev_b32 v201, 4, v200")
    wg_map(a, 30, 31, 32)
    a("s_waitcnt lgkmcnt(0)")
    srd(a, 8, 4, 5, 2048*2048); srd(a, 12, 6, 7, 2048*2048); srd(a, 16, 20, 21, WS_SIZE)
    a("s_mul_i32 s44, s3, 28")
    a("s_mul_i32 s40, s31, 144"); a("s_add_u32 s40, s40, s44"); a("s_lshl_b32 s40, s40, 12"); a(f"s_add_u32 s40, s40, {WS_A2}")
    a("s_mul_i32 s41, s30, 144"); a("s_add_u32 s41, s41, s44"); a("s_lshl_b32 s41, s41, 13"); a(f"s_add_u32 s41, s41, {WS_B2}")
    a("s_add_u32 s42, s41, 4096")
    a("s_mul_i32 s45, s3, 20"); a("s_sub_u32 s45, 85, s45")
    a("s_mov_b32 s43, 0")
    def sreg(st, f): return st*48 + f*4
    def loads(st):
        ops = []
        for t in range(4): ops.append([f"buffer_load_dwordx4 {ar(sreg(st,t))}, v201, s[16:19], s40 offen offset:{t*1024}"])
        for c in range(8): ops.append([f"buffer_load_dwordx4 {ar(sreg(st,4+c))}, v201, s[16:19], s{41+c//4} offen offset:{(c&3)*1024}"])
        ops[-1] += ["s_add_u32 s43, s43, 1", "s_cmp_eq_u32 s43, 28", "s_cselect_b32 s46, s45, 1",
                    "s_cmp_eq_u32 s43, 36", "s_cselect_b32 s46, 0x4000, s46",
                    "s_lshl_b32 s47, s46, 12", "s_add_u32 s40, s40, s47", "s_lshl_b32 s47, s46, 13", "s_add_u32 s41, s41, s47", "s_add_u32 s42, s41, 4096"]
        return ops
    for st in range(R-1):
        for g in loads(st):
            for x in g: a(x)
    for i in range(128): a(f"v_mov_b32 v{i}, 0")
    def acc2(c, t): return (t*8 + c)*4
    a(f"s_mov_b32 s48, {36//R}")
    a(".p2align 6")
    a.label("Lg2_loop")
    for st in range(R):
        a(f"s_waitcnt vmcnt({12*(R-2)})")
        ld = loads((st-1) % R)
        i = 0
        for c in range(8):
            for t in range(4):
                d = vr(acc2(c, t))
                a(f"v_mfma_f32_16x16x32_bf16 {d}, {ar(sreg(st,4+c))}, {ar(sreg(st,t))}, {d}")
                if i % 2 == 1 and i//2 < 12:
                    for x in ld[i//2]: a(x)
                i += 1
    a("s_sub_u32 s48, s48, 1"); a("s_cmp_lg_u32 s48, 0"); a("s_cbranch_scc1 Lg2_loop")
    a("v_and_b32 v202, 15, v200"); a("v_lshlrev_b32 v202, 11, v202"); a("v_lshrrev_b32 v203, 4, v200"); a("v_lshl_add_u32 v202, v203, 6, v202")
    a("s_lshl_b32 s49, s31, 2"); a("s_add_u32 s49, s49, s3"); a("s_lshl_b32 s49, s49, 15"); a("s_lshl_b32 s50, s30, 8"); a("s_add_u32 s49, s49, s50")
    for r in range(4): a(f"buffer_load_dwordx4 {vr(208+4*r)}, v202, s[8:11], s49 offen offset:{16*r}")
    a("s_lshl_b32 s50, s3, 13"); a("v_add_u32 v204, s50, v201"); a("v_add_u32 v205, 65536, v204")
    for t in range(4):
        for c in range(8):
            a(f"ds_write_b128 v{204 + t//2}, {vr(acc2(c,t))} offset:{(t&1)*32768 + c*1024}")
    a("s_waitcnt lgkmcnt(0)"); a("s_barrier")
    a("s_lshl_b32 s50, s3, 15"); a("v_add_u32 v204, s50, v201")
    for w in range(4):
        for c in range(8): a(f"ds_read_b128 {vr(w*32+c*4)}, v204 offset:{w*8192 + c*1024}")
    a("s_waitcnt lgkmcnt(0) vmcnt(0)")
    for i in range(32):
        a(f"v_add_f32 v{i}, v{i}, v{32+i}"); a(f"v_add_f32 v{64+i}, v{64+i}, v{96+i}")
    for i in range(32): a(f"v_add_f32 v{i}, v{i}, v{64+i}")
    for r in range(4):
        for d in range(4):
            x = 208+4*r+d
            a(f"v_lshlrev_b32 v230, 16, v{x}"); a(f"v_and_b32 v231, 0xffff0000, v{x}")
            a(f"v_add_f32 v230, v230, v{(2*d)*4+r}"); a(f"v_add_f32 v231, v231, v{(2*d+1)*4+r}")
            a(f"v_cvt_pk_bf16_f32 v{x}, v230, v231")
        a(f"buffer_store_dwordx4 {vr(208+4*r)}, v202, s[12:15], s49 offen offset:{16*r}")
    a.label("Lg2_end")
    a("s_endpgm")
    return a, kernel_desc("gemm2_kernel", 512, 256)

def build(extra_front=(), extra_kernels=()):
    hdr = list(extra_front) + [
           "; @launch kernel=prep_kernel grid=(256,1,1) block=(256,1,1) lds=16384",
           f"; @launch kernel=gemm1_kernel grid=(256,1,1) block=(256,1,1) lds={NS*STG}",
           "; @launch kernel=attn_kernel grid=(256,1,1) block=(256,1,1) lds=65536",
           "; @launch kernel=gemm2_kernel grid=(256,1,1) block=(256,1,1) lds=131072",
           '.amdgcn_target "amdgcn-amd-amdhsa--gfx950"']
    body = []; descs = []
    for g in (gen_prep, gen_gemm1, gen_attn, gen_gemm2) + tuple(extra_kernels):
        a, d = g()
        lines, n = pad_hazards_fast(a.L)
        print(g.__name__, len(lines), "lines,", n, "pads", file=sys.stderr)
        body += lines; descs.append(d)
    return "\n".join(hdr + body) + "\n" + "".join(descs)

if __name__ == "__main__":
    out = sys.argv[1] if len(sys.argv) > 1 else "parallel_sum__sliding_block__dense_activation_relu__prompt.s"
    open(out, "w").write(build())
```

```python
import sys
from asmlib import *
import v1
def mk_probe(argoff, base, n=256, stride=4224):
    def gen_probe():
        a = Asm(); kernel_header(a, "probe_kernel")
        a("s_cmp_ge_u32 s2, 1"); a("s_cbranch_scc1 Lpr_end")
        if n:
            a(f"s_load_dwordx2 s[4:5], s[0:1], {argoff}")
            a("s_waitcnt lgkmcnt(0)")
            v1.srd(a, 8, 4, 5, base + n*stride + 4096)
            a("v_mov_b32 v1, 0"); a(f"s_mov_b32 s12, {base}"); a(f"s_mov_b32 s13, {n}")
            a.label("Lpr_loop")
            a("buffer_load_dword v2, v1, s[8:11], s12 offen"); a("s_waitcnt vmcnt(0)")
            a(f"s_add_u32 s12, s12, {stride}"); a("s_sub_u32 s13, s13, 1"); a("s_cmp_lg_u32 s13, 0"); a("s_cbranch_scc1 Lpr_loop")
        a.label("Lpr_end"); a("s_endpgm")
        return a, kernel_desc("probe_kernel", 8, 8, 32)
    return gen_probe
MB = 1<<20
V = {"A": (24, 0, 0), "B": (24, 0, 256), "C": (64, 100*MB, 256), "D": (64, 250*MB, 256), "E": (64, 45*MB, 256), "F": (48, 0, 256)}
for k, (off, base, n) in V.items():
    s = v1.build(extra_front=["; @launch kernel=probe_kernel grid=(1,1,1) block=(64,1,1) lds=0"], extra_kernels=[mk_probe(off, base, n)])
    open(f"probe_{k}.s", "w").write(s)
```

```python
import sys, math, struct
from asmlib import *

NAME = "parallel_sum__sliding_block__dense_activation_relu__prompt_kernel"
MB = 1 << 20
WS_XF, WS_A2, WS_KF, WS_VF, WS_EX, WS_FL = 0, 4*MB, 22*MB, 26*MB, 30*MB, 38*MB
WS_FL2 = WS_FL + 128*1024
WS_EP = WS_FL + 256*1024
WS_SIZE = 39*MB
OOB = 0x4000000
EV_LN, EV_KV, EV_H, EV_O = 0, 8, 16, 24
QSCALE = (32 ** -0.5) * math.log2(math.e)
def f2u(f): return struct.unpack("<I", struct.pack("<f", f))[0]
def vr(b, n=4): return f"v[{b}:{b+n-1}]"
def ar(b, n=4): return f"a[{b}:{b+n-1}]"
MF = "v_mfma_f32_16x16x32_bf16"

class Cfg:
    stamps = False
    pf_w = True
    pf_w2 = True
    spin_cap = 1 << 18

class Prog(Asm):
    def __init__(self):
        super().__init__()
        self.nvm = 0; self.vm_done = 0; self.nds = 0; self.ds_done = 0; self.tk = {}; self.nlab = 0; self.nst = 0
    def vm(self, text, name=None):
        self(text); self.nvm += 1
        if name: self.tk[name] = ("vm", self.nvm)
    def ds(self, text, name=None):
        self(text); self.nds += 1
        if name: self.tk[name] = ("ds", self.nds)
    def wait(self, *names, ds_max=15):
        v = max([self.tk[n][1] for n in names if self.tk[n][0] == "vm"], default=0)
        d = max([self.tk[n][1] for n in names if self.tk[n][0] == "ds"], default=0)
        parts = []
        if v > self.vm_done:
            k = min(self.nvm - v, 63); parts.append(f"vmcnt({k})"); self.vm_done = self.nvm - k
        if d > self.ds_done:
            k = min(self.nds - d, ds_max); parts.append(f"lgkmcnt({k})"); self.ds_done = self.nds - k
        if parts: self("s_waitcnt " + " ".join(parts))
    def wait_all(self, vm=False, ds=False):
        parts = []
        if vm: parts.append("vmcnt(0)"); self.vm_done = self.nvm
        if ds: parts.append("lgkmcnt(0)"); self.ds_done = self.nds
        self("s_waitcnt " + " ".join(parts))
    def lab(self, p="L"):
        self.nlab += 1; return f"{p}{self.nlab}"
    def stamp(self):
        if not Cfg.stamps: return
        b = 62 + 2*self.nst; self.nst += 1
        assert b + 1 <= 101
        self(f"s_memrealtime s[{b}:{b+1}]"); self.wait_all(ds=True)

def srd(a, d, lo, nbytes):
    a(f"s_mov_b32 s{d}, s{lo}"); a(f"s_mov_b32 s{d+1}, s{lo+1}")
    a(f"s_mov_b32 s{d+2}, {nbytes}"); a(f"s_mov_b32 s{d+3}, 0x20000")

S_X, S_WQKV, S_W1, S_WS, S_W2, S_WO, S_OUT = 4, 8, 12, 16, 20, 24, 28
sRB, sHD, sMYFL, sPSTAR = 32, 33, 34, 35
sTAG = 36
sRT, sCT, sKH, sMYFL2 = 38, 39, 40, 41
def sr(b): return f"s[{b}:{b+3}]"
VADDR, VDMA = 208, 226
VL16, VLANE, VP128, VP512, VONE = 233, 234, 235, 236, 237
VTAG = 238
V2DMA = 240
V2A = 244
VPOLL = 246
VT = 248
RING1 = 4096; STG = 28672; NS = 4
LDS_V = 0; LDS_K = 131072; LDS_LN = 131072
RING2 = 32768; STG2 = 16384; NS2 = 6
LDS_TOTAL = 163840

def wave_allreduce(a, vs, tmps, op):
    for mod in ("quad_perm:[1,0,3,2]", "quad_perm:[2,3,0,1]", "row_half_mirror", "row_mirror"):
        for v in vs: a(f"{op}_dpp v{v}, v{v}, v{v} {mod} row_mask:0xf bank_mask:0xf")
    rowgroup_reduce(a, vs, tmps, op)
def rowgroup_reduce(a, vs, tmps, op):
    for sw in ("v_permlane16_swap_b32", "v_permlane32_swap_b32"):
        for v, t in zip(vs, tmps): a(f"v_mov_b32 v{t}, v{v}")
        for v, t in zip(vs, tmps): a(f"{sw} v{v}, v{t}")
        for v, t in zip(vs, tmps): a(f"{op} v{v}, v{v}, v{t}")
def round_bf16(a, vs):
    for v in vs: a(f"v_cvt_pk_bf16_f32 v{v}, v{v}, v{v}")
    for v in vs: a(f"v_lshlrev_b32 v{v}, 16, v{v}")

def flag_store(a, sbase, ev):
    a.vm(f"buffer_store_dwordx2 {vr(VTAG,2)}, v{VONE}, {sr(S_WS)}, s{sbase} offen offset:{ev} sc1")
def poll_issue(a, voff, sbase, ev, name):
    a.vm(f"buffer_load_dwordx2 {vr(VPOLL,2)}, v{voff}, {sr(S_WS)}, s{sbase} offen offset:{ev} sc1", name)
def poll_check(a, voff, sbase, ev, name):
    ok = a.lab("Lok"); lp = a.lab("Lsp")
    a.wait(name)
    a(f"v_cmp_ne_u64 vcc, s[{sTAG}:{sTAG+1}], {vr(VPOLL,2)}")
    a("s_nop 1")
    a(f"s_cbranch_vccz {ok}")
    a(f"s_mov_b32 s49, {Cfg.spin_cap}")
    a.label(lp)
    a(f"buffer_load_dwordx2 {vr(VPOLL,2)}, v{voff}, {sr(S_WS)}, s{sbase} offen offset:{ev} sc1")
    a("s_sub_u32 s49, s49, 1")
    a("s_waitcnt vmcnt(0)")
    a(f"v_cmp_ne_u64 vcc, s[{sTAG}:{sTAG+1}], {vr(VPOLL,2)}")
    a("s_cmp_eq_u32 s49, 0"); a(f"s_cbranch_scc1 {ok}")
    a(f"s_cbranch_vccnz {lp}")
    a.label(ok)

def merge(a, ms, fill):
    def run(x):
        if callable(x): x()
        else: a(x)
    for x in fill.get(-1, []): run(x)
    for i, m in enumerate(ms):
        run(m)
        for x in fill.get(i, []): run(x)
def spread(fill, items, lo, hi):
    n = len(items)
    for i, x in enumerate(items):
        g = lo + int(i*(hi-lo)/n)
        fill.setdefault(g, []).append(x)
def spread_free(fill, items, lo, hi):
    n = len(items); last = lo
    for i, x in enumerate(items):
        want = lo + int((i+0.5)*(hi-lo)/n)
        cand = [g for g in range(max(last, want-2), min(hi, want+3))] or [min(hi-1, last)]
        g = min(cand, key=lambda g: (len(fill.get(g, [])), abs(g-want)))
        fill.setdefault(g, []).append(x); last = g

def acc(f, t): return (f*4 + t)*4
def Areg(s, u, t): return (s % NS)*32 + (u*4 + t)*4
def Bslot(k): return 128 + (k % 26)*4
sWQ, sW1o, sA0, sLW = 50, 51, 52, 56

def g1_read(a, n, f, slot):
    s, u = divmod(n, 2); rs = s % NS
    base = (rs & 1)*STG + u*14336; vs = VADDR + 9*(rs >> 1)
    out = []
    for h in range(2):
        if f < 6: va, off = vs + (f & 1), base + (f >> 1)*1024 + h*256
        else: va, off = vs + 2 + (f - 6), base + h*1024
        out.append(lambda d=Bslot(slot)+2*h, va=va, off=off: a.ds(f"ds_read_b64_tr_b16 {ar(d,2)}, v{va} offset:{off}"))
    return out
def g1_dma(a, s):
    slot = s % NS; ops = []
    ops.append(lambda: a(f"s_add_u32 m0, s{sLW}, {slot*STG}"))
    for m in range(3):
        def f(m=m):
            a.vm(f"buffer_load_dwordx4 v{VDMA+m}, {sr(S_WQKV)}, s{sWQ} offen offset:{m*1024} lds")
            if m == 2: a(f"s_add_u32 m0, s{sLW}, {slot*STG+3072}"); a(f"s_add_u32 s{sWQ}, s{sWQ}, {64*6144}")
        ops.append(f)
    for j in range(4):
        def f(j=j):
            a.vm(f"buffer_load_dwordx4 v{VDMA+3+j}, {sr(S_W1)}, s{sW1o} offen offset:{j*1024} lds", f"dma{s}")
            if j == 3: a(f"s_add_u32 s{sW1o}, s{sW1o}, {64*7168}")
        ops.append(f)
    return ops
def g1_aload(a, s):
    ops = []
    for u in range(2):
        for t in range(4):
            def f(u=u, t=t):
                a.vm(f"buffer_load_dwordx4 {ar(Areg(s,u,t))}, v{VL16}, {sr(S_WS)}, s{sA0+t} offen offset:{u*1024} sc1", f"A{s}_{u}")
                if u == 1: a(f"s_add_u32 s{sA0+t}, s{sA0+t}, 2048")
            ops.append(f)
    return ops
def g1_mfma(n, f, slot):
    s, u = divmod(n, 2); out = []
    for t in range(4):
        c = vr(acc(f, t)); x = ar(Areg(s, u, t)); w = ar(Bslot(slot)); cin = "0" if n == 0 else c
        out.append(f"{MF} {c}, {x}, {w}, {cin}" if f in (4, 5) else f"{MF} {c}, {w}, {x}, {cin}")
    return out

def gen():
    a = Prog()
    kernel_header(a, NAME)
    a("s_cmp_ge_u32 s2, 256"); a("s_cbranch_scc1 Lend")
    a("s_load_dwordx16 s[44:59], s[0:1], 0")
    a("s_load_dwordx2 s[60:61], s[0:1], 64")
    if Cfg.stamps: a("s_memrealtime s[62:63]"); a.nst = 1
    a(f"v_and_b32 v{VLANE}, 63, v0"); a("v_lshrrev_b32 v1, 6, v0"); a("v_readfirstlane_b32 s3, v1")
    L = VLANE
    a(f"v_lshlrev_b32 v{VL16}, 4, v{L}")
    a("s_getpc_b64 s[28:29]"); a.label("Lpc0"); a("s_and_b32 s29, s29, 0xffff"); a("s_mov_b32 s30, CODE_BYTES"); a("s_mov_b32 s31, 0x20000")
    a("s_lshr_b32 s42, s2, 3"); a("s_lshl_b32 s42, s42, 2"); a("s_add_u32 s42, s42, s3"); a("s_lshl_b32 s42, s42, 9")
    a(f"v_lshlrev_b32 v1, 7, v{L}")
    a("s_mov_b64 exec, 0xf"); a.vm("buffer_load_dword v2, v1, s[28:31], s42 offen"); a("s_mov_b64 exec, -1")
    a(f"s_lshr_b32 s42, s2, 3"); a(f"s_and_b32 s{sRB}, s42, 3"); a(f"s_lshr_b32 s{sHD}, s42, 2")
    a("s_and_b32 s43, s2, 1"); a("s_lshl_b32 s43, s43, 2"); a(f"s_add_u32 s{sRB}, s{sRB}, s43")
    a("s_and_b32 s43, s2, 6"); a("s_lshl_b32 s43, s43, 2"); a(f"s_add_u32 s{sHD}, s{sHD}, s43")
    a(f"s_and_b32 s{sKH}, s2, 1")
    a(f"s_lshr_b32 s{sRT}, s42, 2"); a("s_and_b32 s43, s2, 2"); a("s_lshl_b32 s43, s43, 2"); a(f"s_add_u32 s{sRT}, s{sRT}, s43")
    a(f"s_and_b32 s{sCT}, s42, 3"); a("s_and_b32 s43, s2, 4"); a(f"s_add_u32 s{sCT}, s{sCT}, s43")
    a(f"s_lshl_b32 s42, s{sRB}, 5"); a(f"s_add_u32 s42, s42, s{sHD}")
    a("s_lshl_b32 s42, s42, 2"); a("s_add_u32 s42, s42, s3")
    a(f"s_lshl_b32 s{sMYFL}, s42, 7"); a(f"s_add_u32 s{sMYFL}, s{sMYFL}, {WS_FL}")
    a("s_lshl_b32 s43, s42, 12")
    a("v_mov_b32 v3, 0")
    a("s_waitcnt lgkmcnt(0)")
    srd(a, S_X, 44, 2048*2048); srd(a, S_WS, 60, WS_SIZE)
    for r in range(2):
        for h in range(2):
            a.vm(f"buffer_load_dwordx4 {vr(8+r*8+h*4)}, v{VL16}, {sr(S_X)}, s43 offen offset:{r*2048+h*1024}", "x")
    a(f"s_mov_b32 s42, {WS_EP}")
    a.vm(f"buffer_load_dwordx2 {vr(VTAG,2)}, v3, {sr(S_WS)}, s42 offen sc1", "epoch")
    srd(a, S_WQKV, 46, 1024*6144); srd(a, S_W1, 52, 1024*7168); srd(a, S_W2, 54, 3584*2048); srd(a, S_WO, 48, 1024*2048)
    srd(a, S_OUT, 56, 2048*2048)
    if Cfg.stamps: a("s_mov_b32 s0, s60"); a("s_mov_b32 s1, s61")
    T = VT
    a(f"v_lshrrev_b32 v{T}, 2, v{L}"); a("s_lshl_b32 s44, s3, 4"); a(f"v_add_u32 v{T}, s44, v{T}")
    a(f"v_mul_u32_u24 v{T}, 6144, v{T}")
    a(f"v_lshrrev_b32 v{T+1}, 5, v{L}"); a(f"v_lshlrev_b32 v{T+1}, 1, v{T+1}"); a(f"v_and_b32 v{T+2}, 3, v{L}"); a(f"v_xor_b32 v{T+1}, v{T+1}, v{T+2}")
    a(f"v_lshl_add_u32 v{T}, v{T+1}, 4, v{T}")
    a(f"s_lshl_b32 s45, s{sHD}, 6"); a(f"v_add_u32 v{VDMA}, s45, v{T}")
    a(f"v_add_u32 v{VDMA+1}, 1024, v{VDMA}"); a(f"v_add_u32 v{VDMA+2}, 2048, v{VDMA}")
    a(f"v_lshrrev_b32 v{T}, 4, v{L}")
    a(f"v_add_u32 v{T+1}, s44, v{T}"); a(f"v_mul_u32_u24 v{T+1}, 7168, v{T+1}")
    a(f"s_mul_i32 s45, s{sHD}, 224"); a(f"s_and_b32 s46, s{sHD}, 1"); a("s_lshl_b32 s47, s46, 5"); a("s_sub_u32 s45, s45, s47")
    a(f"v_add_u32 v{T+1}, s45, v{T+1}")
    a(f"v_and_b32 v{T+2}, 1, v{L}"); a(f"v_lshl_add_u32 v{T+1}, v{T+2}, 4, v{T+1}")
    a(f"v_bfe_u32 v{T+2}, v{L}, 1, 3"); a(f"v_xor_b32 v{T+2}, v{T+2}, v{T}")
    for j in range(4):
        if j == 2: a(f"v_xor_b32 v{T+2}, 4, v{T+2}")
        a(f"v_lshl_add_u32 v{VDMA+3+j}, v{T+2}, 5, v{T+1}")
        if j: a(f"v_add_u32 v{VDMA+3+j}, {j*(4*7168-1024)}, v{VDMA+3+j}")
    a(f"s_mov_b32 s{sWQ}, 0"); a(f"s_mov_b32 s{sW1o}, 0"); a(f"s_mul_i32 s{sLW}, s3, 7168"); a(f"s_add_u32 s{sLW}, s{sLW}, {RING1}")
    for f in g1_dma(a, 0): f()
    a(f"v_and_b32 v{T}, 31, v{L}"); a(f"v_lshlrev_b32 v{VP128}, 7, v{T}"); a(f"v_lshlrev_b32 v{VP512}, 9, v{T}")
    a(f"v_lshlrev_b32 v{VONE}, 26, v{L}")
    a(f"v_min_u32 v{VONE}, {OOB}, v{VONE}")
    a(f"v_lshrrev_b32 v{T}, 5, v{L}"); a(f"v_mul_u32_u24 v{T}, 7168, v{T}")
    a(f"v_and_b32 v{T+1}, 3, v{L}"); a(f"v_lshl_add_u32 v{T}, v{T+1}, 3, v{T}"); a(f"v_add_u32 v{T}, {RING1}, v{T}")
    a(f"v_bfe_u32 v{T+1}, v{L}, 4, 1"); a(f"v_bfe_u32 v{T+2}, v{L}, 2, 2")
    a(f"v_lshl_add_u32 v{T+3}, v{T+1}, 3, v{T+2}")
    a(f"v_lshl_add_u32 v{T+4}, v{T+3}, 6, v{T}")
    a(f"v_lshl_add_u32 v{VADDR}, v{T+1}, 5, v{T+4}")
    a(f"v_xor_b32 v{T+5}, 1, v{T+1}"); a(f"v_lshl_add_u32 v{VADDR+1}, v{T+5}, 5, v{T+4}")
    a(f"v_lshl_add_u32 v{T+4}, v{T+3}, 8, v{T}"); a(f"v_add_u32 v{T+4}, 3072, v{T+4}")
    a(f"v_lshl_add_u32 v{T+5}, v{T+1}, 2, v{T+2}")
    a("s_lshl_b32 s47, s46, 1")
    for f in range(7):
        if f < 6: a(f"s_add_u32 s48, s47, {f}")
        else: a("s_mul_i32 s48, s46, 5"); a("s_sub_u32 s48, 6, s48")
        a(f"v_xor_b32 v{T+6}, s48, v{T+5}"); a(f"v_lshl_add_u32 v{VADDR+2+f}, v{T+6}, 5, v{T+4}")
    for i in range(9): a(f"v_add_u32 v{VADDR+9+i}, {2*STG}, v{VADDR+i}")
    if Cfg.pf_w:
        a(f"v_lshlrev_b32 v4, 7, v{L}")
        a("s_lshl_b32 s44, s2, 2"); a("s_add_u32 s44, s44, s3")
        a(f"s_mul_i32 s45, s44, {36*128}"); a(f"s_add_u32 s45, s45, {256*6144}")
        a(f"s_mul_i32 s44, s44, {42*128}"); a(f"s_add_u32 s44, s44, {256*7168}")
        a("s_mov_b32 exec_hi, 0xf"); a.vm(f"buffer_load_dword v5, v4, {sr(S_WQKV)}, s45 offen")
        a("s_mov_b32 exec_hi, 0x3ff"); a.vm(f"buffer_load_dword v6, v4, {sr(S_W1)}, s44 offen")
        a("s_mov_b32 exec_hi, -1")
    a.wait("x", "epoch")
    a.stamp()
    F = 64
    a("v_mov_b32 v30, 0x3f803f80"); a("v_mov_b32 v24, 0"); a("v_mov_b32 v25, 0")
    for d in range(8):
        for r in range(2): a(f"v_dot2c_f32_bf16 v{24+r}, v{8+r*8+d}, v30")
    a(f"v_add_co_u32 v{VTAG}, vcc, 0x9e3779b9, v{VTAG}"); a(f"v_mov_b32 v31, 0x7f4a7c15")
    a(f"v_addc_co_u32 v{VTAG+1}, vcc, v{VTAG+1}, v31, vcc")
    for r in range(2):
        for d in range(8):
            a(f"v_lshlrev_b32 v{F+r*16+2*d}, 16, v{8+r*8+d}"); a(f"v_and_b32 v{F+r*16+2*d+1}, 0xffff0000, v{8+r*8+d}")
    a(f"v_readfirstlane_b32 s{sTAG}, v{VTAG}"); a(f"v_readfirstlane_b32 s{sTAG+1}, v{VTAG+1}")
    wave_allreduce(a, [24, 25], [28, 29], "v_add_f32")
    for r in range(2): a(f"v_mul_f32 v{24+r}, {f2u(1/1024):#x}, v{24+r}")
    for r in range(2): a(f"v_cvt_pk_bf16_f32 v{32+2*r}, v{24+r}, v{24+r}")
    for r in range(2): a(f"v_lshlrev_b32 v{32+2*r}, 16, v{32+2*r}")
    for r in range(2): a(f"v_sub_f32 v{24+r}, v{24+r}, v{32+2*r}")
    for r in range(2):
        for d in range(8):
            x = F+r*16+2*d
            a(f"v_pk_add_f32 {vr(x,2)}, {vr(x,2)}, {vr(32+2*r,2)} op_sel_hi:[1,0] neg_lo:[0,1] neg_hi:[0,1]")
    for r in range(2): a(f"v_pk_mul_f32 {vr(36+2*r,2)}, {vr(F+r*16,2)}, {vr(F+r*16,2)}")
    for d in range(1, 8):
        for r in range(2):
            x = F+r*16+2*d
            a(f"v_pk_fma_f32 {vr(36+2*r,2)}, {vr(x,2)}, {vr(x,2)}, {vr(36+2*r,2)}")
    for r in range(2): a(f"v_add_f32 v{26+r}, v{36+2*r}, v{37+2*r}")
    for r in range(2):
        for d in range(8): a(f"v_cvt_pk_bf16_f32 v{8+r*8+d}, v{F+r*16+2*d}, v{F+r*16+2*d+1}")
    wave_allreduce(a, [26, 27], [28, 29], "v_add_f32")
    for r in range(2):
        for d in range(8):
            a(f"v_lshlrev_b32 v{F+r*16+2*d}, 16, v{8+r*8+d}"); a(f"v_and_b32 v{F+r*16+2*d+1}, 0xffff0000, v{8+r*8+d}")
    for r in range(2): a(f"v_mul_f32 v{26+r}, {f2u(1/1024):#x}, v{26+r}")
    for r in range(2): a(f"v_fma_f32 v{26+r}, -v{24+r}, v{24+r}, v{26+r}")
    for r in range(2): a(f"v_max_f32 v{26+r}, 0, v{26+r}")
    round_bf16(a, [26, 27])
    for r in range(2): a(f"v_add_f32 v{26+r}, {f2u(1e-5):#x}, v{26+r}")
    round_bf16(a, [26, 27])
    for r in range(2): a(f"v_sqrt_f32 v{26+r}, v{26+r}")
    round_bf16(a, [26, 27])
    for r in range(2): a(f"v_rcp_f32 v{32+2*r}, v{26+r}")
    a(f"v_and_b32 v40, 7, v{L}"); a("s_lshl_b32 s44, s3, 1")
    for r in range(2):
        a(f"s_add_u32 s45, s44, {r}")
        a(f"v_xor_b32 v{41+r}, s45, v40"); a(f"v_lshlrev_b32 v{41+r}, 4, v{41+r}"); a(f"v_lshl_add_u32 v{41+r}, v{L}, 7, v{41+r}")
        a(f"v_add_u32 v{41+r}, {LDS_LN}, v{41+r}")
    for r in range(2):
        for h in range(2):
            for d in range(4*h, 4*h+4):
                x = F+r*16+2*d
                a(f"v_pk_mul_f32 {vr(x,2)}, {vr(x,2)}, {vr(32+2*r,2)} op_sel_hi:[1,0]")
            for d in range(4*h, 4*h+4):
                x = F+r*16+2*d
                a(f"v_cvt_pk_bf16_f32 v{8+r*8+d}, v{x}, v{x+1}")
            a.ds(f"ds_write_b128 v{41+r}, {vr(8+r*8+h*4)} offset:{h*8192}")
    a(f"v_lshrrev_b32 v43, 3, v{L}")
    a("v_xor_b32 v44, v43, v40"); a("v_lshlrev_b32 v44, 4, v44"); a("v_lshl_add_u32 v44, v43, 7, v44")
    a("s_lshl_b32 s44, s3, 12"); a(f"s_add_u32 s44, s44, {LDS_LN}"); a("v_add_u32 v44, s44, v44")
    a("v_lshlrev_b32 v45, 8, v43"); a("v_lshl_add_u32 v45, v40, 4, v45")
    a(f"s_lshl_b32 s44, s{sRB}, 4"); a(f"s_lshr_b32 s45, s{sHD}, 1"); a("s_add_u32 s44, s44, s45"); a("s_lshl_b32 s44, s44, 15")
    a("s_lshl_b32 s45, s46, 7"); a("s_add_u32 s44, s44, s45"); a("s_lshl_b32 s45, s3, 13"); a("s_add_u32 s44, s44, s45"); a("s_add_u32 s45, s44, 4096")
    a.wait_all(ds=True); a("s_barrier")
    for j in range(4): a.ds(f"ds_read_b128 {vr(48+4*j)}, v44 offset:{j*1024}", f"ln{j}")
    for j in range(4):
        a.wait(f"ln{j}")
        a.vm(f"buffer_store_dwordx4 {vr(48+4*j)}, v45, {sr(S_WS)}, s{44+j//2} offen offset:{(j&1)*2048} sc1", "xf")
    a.stamp()
    for f in g1_dma(a, 1): f()
    a(f"v_lshrrev_b32 v{T}, 4, v{L}")
    a(f"v_bfe_u32 v{T+1}, v{L}, 1, 3"); a(f"v_xor_b32 v{T+1}, v{T+1}, v{T}")
    a(f"v_and_b32 v{T+2}, 1, v{L}"); a(f"v_lshlrev_b32 v{T+2}, 4, v{T+2}")
    a(f"s_lshl_b32 s44, s{sCT}, 8"); a(f"v_add_u32 v{T+2}, s44, v{T+2}")
    a(f"v_lshl_add_u32 v{T+2}, v{T}, 11, v{T+2}")
    a(f"v_lshl_add_u32 v{T+3}, v{T+1}, 5, v{T+2}")
    a(f"v_xor_b32 v{T+1}, 4, v{T+1}"); a(f"v_lshl_add_u32 v{T+4}, v{T+1}, 5, v{T+2}")
    a("s_lshl_b32 s44, s3, 14"); a(f"v_add_u32 v{V2DMA}, s44, v{T+3}")
    a(f"s_add_u32 s44, s44, {4*2048-1024}"); a(f"v_add_u32 v{V2DMA+1}, s44, v{T+4}")
    a("s_and_b32 s44, s3, 1"); a("s_lshl_b32 s44, s44, 4"); a("s_lshr_b32 s45, s3, 1"); a("s_lshl_b32 s45, s45, 2"); a("s_add_u32 s44, s44, s45")
    a("s_lshl_b32 s44, s44, 11"); a(f"v_add_u32 v{V2DMA+2}, s44, v{T+3}")
    a(f"s_add_u32 s44, s44, {8*2048-1024}"); a(f"v_add_u32 v{V2DMA+3}, s44, v{T+4}")
    a(f"s_lshl_b32 s44, s{sKH}, 10"); a(f"v_add_u32 v{V2A}, s44, v{VL16}"); a("s_xor_b32 s44, s44, 1024"); a(f"v_add_u32 v{V2A+1}, s44, v{VL16}")
    a(f"s_lshl_b32 s44, s{sRB}, 2"); a("s_add_u32 s44, s44, s3"); a(f"s_lshl_b32 s{sA0}, s44, 17")
    for t in range(1, 4): a(f"s_add_u32 s{sA0+t}, s{sA0}, {t*32768}")
    a("s_lshl_b32 s57, s44, 12"); a(f"s_add_u32 s57, s57, {WS_FL}")
    a.wait("xf")
    flag_store(a, sMYFL, EV_LN)
    a.stamp()
    for f in g1_dma(a, 2): f()
    poll_issue(a, VP128, 57, EV_LN, "pl")
    poll_check(a, VP128, 57, EV_LN, "pl")
    a.stamp()
    for f in g1_aload(a, 0): f()
    for f in g1_aload(a, 1): f()
    a.wait("dma0"); a("s_barrier")
    for f in range(13):
        for x in g1_read(a, 0, f, f): x()
    for f in g1_dma(a, 3): f()
    a.wait_all(ds=True); a.wait("A0_0")
    a.stamp()
    TS = 2
    FORD = [2, 3, 4, 5, 6, 7, 8, 9, 10, 11, 12, 0, 1]
    groups = [(n, f) for n in range(32-2*TS) for f in range(13)] + [(n, f) for f in FORD for n in range(32-2*TS, 32)]
    def batch_ms(b): return [m for k in range(13*b, 13*b+13) for m in g1_mfma(*groups[k], k)]
    def batch_reads(b): return [x for k in range(13*b, 13*b+13) for x in g1_read(a, *groups[k], k)]
    for b in range(32-2*TS):
        s, u = divmod(b, 2)
        fill = {}
        spread(fill, batch_reads(b+1), 0, 44)
        if u == 0:
            ld = g1_aload(a, s+2) if s+2 < 16 else []
            spread_free(fill, ld, 0, 52)
            merge(a, batch_ms(b), fill)
            if s+1 < 16-TS: a.wait_all(ds=True); a.wait(f"dma{s+1}", f"A{s}_1")
            else: a.wait_all(ds=True); a.wait("dma15", f"A{s}_1")
            a("s_barrier")
        else:
            ld = g1_dma(a, s+NS) if s+NS < 16 else []
            if Cfg.pf_w2 and s in (12, 13): ld = pf_w2(a, s-12)
            spread_free(fill, ld, 0, 52)
            merge(a, batch_ms(b), fill)
            a.wait_all(ds=True)
            if s+1 < 16-TS: a.wait(f"A{s+1}_0")
            else: a.wait("A15_1")
    a.stamp()
    def cvt4(f0, t0, f1, t1):
        d = acc(f0, t0); b = acc(f1, t1)
        return [f"v_cvt_pk_bf16_f32 v{d}, v{d}, v{d+1}", f"v_cvt_pk_bf16_f32 v{d+1}, v{d+2}, v{d+3}",
                f"v_cvt_pk_bf16_f32 v{d+2}, v{b}, v{b+1}", f"v_cvt_pk_bf16_f32 v{d+3}, v{b+2}, v{b+3}"]
    def relu4(d): return [f"v_pk_max_i16 v{d+i}, v{d+i}, 0" for i in range(4)]
    ms = [m for b in range(32-2*TS, 32) for m in batch_ms(b)]
    fill = {}
    for b in range(32-2*TS, 31):
        o = 52*(b-(32-2*TS))
        spread(fill, batch_reads(b+1), o, o+44)
        fill.setdefault(o+51, []).append(lambda: a.wait_all(ds=True))
    G = 8*TS*2
    pre = [f"s_lshl_b32 s44, s{sHD}, 17", f"s_lshl_b32 s45, s{sRB}, 14", "s_add_u32 s44, s44, s45", "s_lshl_b32 s45, s3, 12", "s_add_u32 s44, s44, s45",
           f"s_add_u32 s50, s44, {WS_KF}", f"s_add_u32 s51, s44, {WS_VF}",
           f"s_add_u32 s45, s45, {LDS_K+16384}", f"v_add_u32 v{T}, s45, v{VL16}", f"v_add_u32 v{T+1}, {(LDS_V-LDS_K) & 0xffffffff}, v{T}",
           f"s_lshl_b32 s44, s{sRB}, 1", "s_lshr_b32 s45, s3, 1", "s_add_u32 s44, s44, s45", f"s_mul_i32 s44, s44, {144*8192}",
           "s_and_b32 s45, s3, 1", "s_lshl_b32 s45, s45, 12", "s_add_u32 s44, s44, s45", f"s_add_u32 s44, s44, {WS_A2}",
           f"s_lshr_b32 s45, s{sHD}, 1", "s_mul_i32 s45, s45, 7", f"s_and_b32 s46, s{sHD}, 1", "s_lshl_b32 s47, s46, 2", "s_add_u32 s47, s47, s45",
           "s_lshl_b32 s47, s47, 13", "s_add_u32 s52, s44, s47",
           "s_add_u32 s45, s45, 3", "s_lshl_b32 s45, s45, 13", "s_lshl_b32 s46, s46, 9", "s_add_u32 s45, s45, s46", "s_add_u32 s53, s44, s45",
           f"s_add_u32 s45, s{sHD}, 112", "s_lshl_b32 s45, s45, 13", "s_add_u32 s54, s44, s45",
           f"v_and_b32 v{T+2}, 15, v{L}", f"v_lshlrev_b32 v{T+2}, 4, v{T+2}", f"v_bfe_u32 v{T+3}, v{L}, 4, 1", f"v_lshl_add_u32 v{T+2}, v{T+3}, 10, v{T+2}",
           f"v_lshrrev_b32 v{T+3}, 5, v{L}", f"v_lshl_add_u32 v{T+2}, v{T+3}, 8, v{T+2}"]
    spread(fill, pre, 0, G)
    it = []
    for t in range(4):
        it += cvt4(2, t, 3, t)
        it.append(lambda t=t: a.vm(f"buffer_store_dwordx4 {vr(acc(2,t))}, v{VL16}, {sr(S_WS)}, s50 offen offset:{t*1024} sc1"))
        it.append(lambda t=t: a.ds(f"ds_write_b128 v{T}, {vr(acc(2,t))} offset:{t*1024}"))
    spread(fill, it, G+4, 2*G+2)
    it = []
    for p in range(2):
        for j in range(2):
            it += cvt4(4+j, 2*p, 4+j, 2*p+1)
            it.append(lambda p=p, j=j: a.vm(f"buffer_store_dwordx4 {vr(acc(4+j,2*p))}, v{VL16}, {sr(S_WS)}, s51 offen offset:{p*2048+j*1024} sc1", "kv"))
            it.append(lambda p=p, j=j: a.ds(f"ds_write_b128 v{T+1}, {vr(acc(4+j,2*p))} offset:{p*2048+j*1024}"))
    spread(fill, it, 2*G+4, 3*G-4)
    for b in range(3):
        it = []
        for t in range(4):
            it += cvt4(6+2*b, t, 7+2*b, t) + relu4(acc(6+2*b, t))
            def st(b=b, t=t):
                a.vm(f"buffer_store_dwordx4 {vr(acc(6+2*b,t))}, v{VL16}, {sr(S_WS)}, s52 offen offset:{t*1024} sc1")
                if t == 3: a("s_add_u32 s52, s52, 8192")
            it.append(st)
        spread(fill, it, (3+b)*G+4, (4+b)*G+4 if b < 2 else 6*G-4)
    it = []
    for p in range(2):
        d = acc(12, 2*p)
        it += cvt4(12, 2*p, 12, 2*p+1) + relu4(d) + [f"v_permlane16_swap_b32 v{d}, v{d+2}", f"v_permlane16_swap_b32 v{d+1}, v{d+3}"]
        it.append(lambda p=p, d=d: a.vm(f"buffer_store_dwordx4 {vr(d)}, v{T+2}, {sr(S_WS)}, s53 offen offset:{p*2048} sc1", "h"))
    spread(fill, it, 6*G-4, 6*G+G//2)
    fill.setdefault(4*G+G//2, []).extend([lambda: a.wait("kv"), lambda: flag_store(a, sMYFL, EV_KV)])
    merge(a, ms, fill)
    a.stamp()
    a(f"s_sub_u32 s55, s{sMYFL}, {32*4*128}")
    a(f"v_mov_b32 v{T+4}, 0")
    a(f"s_cmp_eq_u32 s{sRB}, 0"); a(f"s_cselect_b32 s55, s{sMYFL}, s55")
    a(f"s_cselect_b32 s44, {OOB}, 0"); a("s_add_u32 s50, s50, s44"); a("s_add_u32 s51, s51, s44")
    a("s_lshl_b32 s44, s3, 1"); a(f"s_sub_u32 s44, 8, s44"); a(f"s_cmp_eq_u32 s{sRB}, 0"); a(f"s_cselect_b32 s{sPSTAR}, s44, 99")
    poll_issue(a, T+4, 55, EV_KV, "pk")
    a(f"s_mov_b32 s44, {f2u(QSCALE):#x}")
    for t in range(4):
        for f in range(2):
            for i in range(4): a(f"v_mul_f32 v{acc(f,t)+i}, s44, v{acc(f,t)+i}")
        for x in cvt4(0, t, 1, t): a(x)
    Q = 0
    O, Lr, M, C, CD, BL, BU, S, P, TT = 32, 64, 80, 84, 100, 116, 120, 128, 160, 176
    KA, VA, ONES = 192, 208, 232
    a(f"v_and_b32 v{TT}, 15, v{L}"); a(f"v_lshrrev_b32 v{TT+1}, 4, v{L}"); a(f"v_lshlrev_b32 v{TT+1}, 2, v{TT+1}")
    a(f"v_mov_b32 v{TT+2}, {f2u(-1e30):#x}"); a(f"v_mov_b32 v{TT+4}, 0x3f803f80")
    for r in range(4):
        a(f"v_add_u32 v{TT+3}, {r}, v{TT+1}"); a(f"v_cmp_le_u32 vcc, v{TT+3}, v{TT}")
        a(f"v_accvgpr_write_b32 a{ONES+r}, v{TT+4}"); a(f"v_mov_b32 v{M+r}, v{TT+2}")
        a(f"v_cndmask_b32_e64 v{BL+r}, v{TT+2}, 0, vcc"); a(f"v_cndmask_b32_e64 v{BU+r}, 0, v{TT+2}, vcc")
    VK, VV = TT+5, TT+6
    a("s_lshl_b32 s44, s3, 12"); a(f"v_add_u32 v{VV}, s44, v{VL16}"); a(f"v_add_u32 v{VK}, {LDS_K}, v{VV}")
    poll_check(a, T+4, 55, EV_KV, "pk")
    a("s_sub_u32 s50, s50, 16384"); a("s_sub_u32 s51, s51, 16384")
    a("s_lshl_b32 s44, s3, 12"); a(f"s_add_u32 m0, s44, {LDS_K}")
    for j in range(4): a.vm(f"buffer_load_dwordx4 v{VL16}, {sr(S_WS)}, s50 offen offset:{j*1024} sc1 lds", "pk")
    a(f"s_add_u32 m0, s44, {LDS_V}")
    for j in range(4): a.vm(f"buffer_load_dwordx4 v{VL16}, {sr(S_WS)}, s51 offen offset:{j*1024} sc1 lds", "pv")
    a.wait("h"); flag_store(a, sMYFL, EV_H)
    a(f"s_cmp_lg_u32 s{sMYFL}, {WS_FL}"); a("s_cbranch_scc1 Lnoep")
    a(f"v_lshlrev_b32 v{TT+7}, 9, v{L}")
    for k in range(4):
        a(f"s_mov_b32 s45, {WS_FL + k*64*512}")
        a(f"buffer_load_dwordx2 {vr(VPOLL,2)}, v{TT+7}, {sr(S_WS)}, s45 offen offset:{EV_LN} sc1"); a("s_waitcnt vmcnt(0)")
        a.tk["ep"] = ("vm", 0)
        poll_check(a, TT+7, 45, EV_LN, "ep")
    a(f"s_mov_b32 s45, {WS_EP}")
    a(f"buffer_store_dwordx2 {vr(VTAG,2)}, v{VONE}, {sr(S_WS)}, s45 offen sc1"); a("s_waitcnt vmcnt(0)")
    a.label("Lnoep")
    a("s_lshl_b32 s56, s3, 11"); a(f"s_add_u32 s56, s56, {RING2}")
    a(f"s_mul_i32 s57, s{sKH}, {56*65536}")
    a(f"s_mul_i32 s58, s{sRT}, 144"); a(f"s_mul_i32 s44, s{sKH}, 56"); a("s_add_u32 s58, s58, s44"); a("s_lshl_b32 s58, s58, 13")
    a("s_lshl_b32 s44, s3, 11"); a("s_add_u32 s58, s58, s44"); a(f"s_add_u32 s58, s58, {WS_A2}")
    a(f"s_lshr_b32 s44, s{sRT}, 1"); a("s_lshl_b32 s44, s44, 7"); a(f"s_and_b32 s45, s{sRT}, 1"); a("s_lshl_b32 s45, s45, 1"); a("s_add_u32 s44, s44, s45")
    a("s_lshr_b32 s45, s3, 1"); a("s_add_u32 s44, s44, s45"); a("s_lshl_b32 s59, s44, 7"); a(f"s_add_u32 s59, s59, {WS_FL}")
    a.wait("pv"); a.wait_all(ds=True); a("s_barrier")
    a.stamp()
    NSTEP = 80; NMAIN = 64; AR = 24
    def g2_dma(st):
        ops = []
        shared = st < 56 and st % 7 == 3
        buf = S_W2 if st < 56 else S_WO
        ldsoff = (st % (2*NS2))*8192
        def f0():
            if st == 56: a(f"s_lshl_b32 s57, s{sKH}, 19")
            if st == 64: a(f"s_mov_b32 s57, {16*65536}")
            a(f"s_add_u32 m0, s56, {ldsoff}"); a("s_nop 0")
            a.vm(f"buffer_load_dwordx4 v{V2DMA+2*shared}, {sr(buf)}, s57 offen lds")
        def f1():
            a.vm(f"buffer_load_dwordx4 v{V2DMA+2*shared+1}, {sr(buf)}, s57 offen offset:1024 lds", f"b{st}")
            a("s_add_u32 s57, s57, 65536")
        return [f0, f1]
    def A2reg(st, t): return (st % AR)*8 + 4*t
    def g2_aload(st):
        def f0():
            if st == 56: a(f"s_mul_i32 s44, s{sKH}, {48*8192}"); a(f"s_add_u32 s58, s58, {56*8192}"); a("s_sub_u32 s58, s58, s44")
            if st == 64: a(f"s_lshl_b32 s44, s{sKH}, 16"); a(f"s_add_u32 s58, s58, {8*8192}"); a("s_sub_u32 s58, s58, s44")
            a.vm(f"buffer_load_dwordx4 {ar(A2reg(st,0))}, v{V2A}, {sr(S_WS)}, s58 offen sc1", f"a{st}")
            if st >= NMAIN: a("s_add_u32 s58, s58, 8192")
        def f1():
            a.vm(f"buffer_load_dwordx4 {ar(A2reg(st,1))}, v{V2A+1}, {sr(S_WS)}, s58 offen sc1", f"a{st}")
            a("s_add_u32 s58, s58, 8192")
        return [f0, f1] if st < NMAIN else [f0]
    KINDS = {"full": [(0,0,None),(0,1,None),(1,0,None),(1,1,None)],
             "causal": [(0,0,"L"),(1,0,None),(1,1,"L")],
             "upper": [(0,0,"U"),(0,1,None),(1,1,"U")]}
    units = []
    for p in range(10):
        for qp in range(2):
            rel = p - qp
            if 0 <= rel <= 8: units.append((p, qp, "upper" if rel == 0 else "causal" if rel == 8 else "full"))
    def rdK(p, tag):
        for k in range(2): a.ds(f"ds_read_b128 {ar(KA+(p&1)*8+4*k)}, v{VK} offset:{p*2048+k*1024}", f"{tag}K{p}")
    def rdV(p):
        for j in range(2): a.ds(f"ds_read_b128 {ar(VA+(p%3)*8+4*j)}, v{VV} offset:{p*2048+j*1024}", f"V{p}")
    def reset_at(p, regs, src):
        if p in (2, 4, 6, 8):
            sk = a.lab("Lrs")
            a(f"s_cmp_lg_u32 s{sPSTAR}, {p}"); a(f"s_cbranch_scc1 {sk}")
            for r in regs: a(f"v_mov_b32 v{r}, {src}")
            a.label(sk)
    side = [x for st in range(2*NS2) for x in g2_dma(st)]
    def side_pop(n=1):
        for _ in range(n):
            if side: side.pop(0)()
    tiles = [(p, qp, q, k, mt) for (p, qp, kind) in units for (q, k, mt) in KINDS[kind]]
    rdK(0, "a")
    LAG = 3
    for i in range(len(tiles) + LAG):
        if i < len(tiles):
            p, qp, q, k, mt = tiles[i]
            if i == 0 or tiles[i-1][0] != p:
                a.wait(f"aK{p}")
                if p+1 < 10: pend = p+1
                else: pend = None
            c = "0" if mt is None else vr(BL if mt == "L" else BU)
            a(f"{MF} {vr(S+(i%8)*4)}, {ar(KA+(p&1)*8+4*k)}, {vr(Q+4*(2*qp+q))}, {c}")
            if pend is not None: rdK(pend, "a"); pend = None
            if i % 4 == 2: side_pop()
        j = i - LAG
        if j >= 0:
            p, qp, q, k, mt = tiles[j]
            if j == 0 or tiles[j-1][0] != p: reset_at(p, range(M, M+4), f"v{TT+2}")
            s = S+(j%8)*4; m = M+2*qp+q
            a(f"v_max3_f32 v{m}, v{s}, v{s+1}, v{m}"); a(f"v_max3_f32 v{m}, v{s+2}, v{s+3}, v{m}")
    rdK(0, "b"); rdK(1, "b"); rdV(0)
    poll_issue(a, VP512, 59, EV_H, "ph")
    rowgroup_reduce(a, [M, M+1, M+2, M+3], [TT+8, TT+9, TT+10, TT+11], "v_max_f32")
    for q in range(4):
        for r in range(4): a(f"v_sub_f32 v{C+4*q+r}, 0, v{M+q}")
    a.stamp()
    def X(u):
        p, qp, kind = units[u]; out = []
        pre = []
        if kind != "full":
            B = BL if kind == "causal" else BU
            for q in range(2):
                for r in range(4): pre.append(f"v_add_f32 v{CD+8*(u&1)+4*q+r}, v{B+r}, v{C+4*(2*qp+q)+r}")
        for (q, k, mt) in KINDS[kind]:
            c = vr(C+4*(2*qp+q)) if mt is None else vr(CD+8*(u&1)+4*q)
            out.append(f"{MF} {vr(S+16*(u&1)+(q*2+k)*4)}, {ar(KA+(p&1)*8+4*k)}, {vr(Q+4*(2*qp+q))}, {c}")
        return pre, out
    def Y(u):
        p, qp, kind = units[u]; have = {(q, k) for (q, k, mt) in KINDS[kind]}; out = []
        for q in range(2):
            for k in range(2):
                s = S+16*(u&1)+(q*2+k)*4; d = P+8*(u&1)+4*q+2*k
                if (q, k) in have:
                    out += [f"v_exp_f32 v{s+r}, v{s+r}" for r in range(4)]
                    out += [f"v_cvt_pk_bf16_f32 v{d}, v{s}, v{s+1}", f"v_cvt_pk_bf16_f32 v{d+1}, v{s+2}, v{s+3}"]
                else: out += [f"v_mov_b32 v{d}, 0", f"v_mov_b32 v{d+1}, 0"]
        return out
    def Z(u):
        p, qp, kind = units[u]; out = []
        first = kind == "upper"
        for q in range(2):
            qq = 2*qp+q; pb = vr(P+8*(u&1)+4*q)
            for j in range(2):
                o = vr(O+(qq*2+j)*4); out.append(f"{MF} {o}, {ar(VA+(p%3)*8+4*j)}, {pb}, {'0' if first else o}")
            l = vr(Lr+4*qq); out.append(f"{MF} {l}, {ar(ONES)}, {pb}, {'0' if first else l}")
        return out
    NU = len(units)
    pre, xs = X(0)
    for x in pre: a(x)
    a.wait("bK0")
    for x in xs: a(x)
    PH_CHECK = 6
    for u in range(NU+1):
        ys = Y(u) if u < NU else []
        mm = []
        if u+1 < NU:
            pre, xs = X(u+1)
            for x in pre: a(x)
            a.wait(f"bK{units[u+1][0]}")
            mm += xs
        zs = []
        if u >= 1:
            pz = units[u-1][0]
            zs = Z(u-1)
        if u+1 < NU and units[u+1][0] != units[u][0]:
            p = units[u+1][0]
            kq = (lambda p=p: (rdK(p+1, "b") if p+1 < 10 else None, rdV(p)))
        else: kq = None
        out = []
        nm = len(mm) + len(zs); yi = 0
        per = len(ys)/max(1, nm)
        seq = mm + zs
        for i, m in enumerate(seq):
            if i == len(mm) and zs:
                a.wait(f"V{pz}")
                if u-2 < 0 or units[u-2][0] != pz: reset_at(pz, list(range(O, O+32)) + list(range(Lr, Lr+16)), "0")
            a(m)
            if i == 0 and kq: kq()
            if i in (2, 6): side_pop()
            tgt = int(round((i+1)*per))
            while yi < tgt: a(ys[yi]); yi += 1
        while yi < len(ys): a(ys[yi]); yi += 1
        if u == PH_CHECK:
            side_pop(99)
            poll_check(a, VP512, 59, EV_H, "ph")
            side += [x for st in range(Cfg.a_prefill) for x in g2_aload(st)]
        if u > PH_CHECK: side_pop(2)
    for qq in range(4): a(f"v_rcp_f32 v{TT+8+qq}, v{Lr+4*qq}")
    for qq in range(4):
        o = O+qq*8
        for i in range(8): a(f"v_mul_f32 v{o+i}, v{o+i}, v{TT+8+qq}")
        for i in range(4): a(f"v_cvt_pk_bf16_f32 v{o+i}, v{o+2*i}, v{o+2*i+1}")
        a.vm(f"buffer_store_dwordx4 {vr(o)}, v{VL16}, {sr(S_WS)}, s54 offen offset:{qq*1024} sc1", "o")
    side_pop(99)
    a.stamp()
    V2R = 208
    a(f"v_lshrrev_b32 v{T}, 2, v{L}")
    a(f"v_and_b32 v{T+1}, 3, v{L}"); a(f"v_lshlrev_b32 v{T+1}, 3, v{T+1}"); a(f"v_lshl_add_u32 v{T+1}, v{T}, 8, v{T+1}")
    a(f"v_add_u32 v{T+1}, {RING2}, v{T+1}"); a(f"v_and_b32 v{T}, 7, v{T}")
    for c in range(8):
        a(f"v_xor_b32 v{T+2}, {c}, v{T}"); a(f"v_lshl_add_u32 v{V2R+c}, v{T+2}, 5, v{T+1}"); a(f"v_add_u32 v{V2R+8+c}, {3*STG2}, v{V2R+c}")
    def B2reg(st, c): return 192 + (st & 1)*32 + 4*c
    def acc2(t, c): return (t*8 + c)*4
    def g2_reads(st):
        k = st % (2*NS2); out = []
        for c in range(8):
            for h in range(2):
                out.append(lambda c=c, h=h: a.ds(f"ds_read_b64_tr_b16 {ar(B2reg(st,c)+2*h,2)}, v{V2R+8*(k//6)+c} offset:{(k%6)*8192+h*4096}", f"r{st}_{c}"))
        return out
    a(f"s_lshl_b32 s44, s{sRT}, 3"); a(f"s_add_u32 s44, s44, s{sCT}"); a("s_lshl_b32 s44, s44, 1"); a(f"s_add_u32 s44, s44, s{sKH}")
    a("s_lshl_b32 s44, s44, 2"); a("s_add_u32 s44, s44, s3"); a("s_xor_b32 s45, s44, 4")
    a("s_lshl_b32 s50, s44, 13"); a(f"s_add_u32 s50, s50, {WS_EX}"); a("s_lshl_b32 s51, s45, 13"); a(f"s_add_u32 s51, s51, {WS_EX}")
    a(f"s_lshl_b32 s{sMYFL2}, s44, 7"); a(f"s_add_u32 s{sMYFL2}, s{sMYFL2}, {WS_FL2}"); a("s_lshl_b32 s52, s45, 7"); a(f"s_add_u32 s52, s52, {WS_FL2}")
    a(f"s_lshl_b32 s44, s{sRT}, 3"); a("s_lshl_b32 s45, s3, 1"); a("s_add_u32 s44, s44, s45"); a(f"s_add_u32 s44, s44, s{sKH}")
    a("s_lshl_b32 s53, s44, 15"); a(f"s_lshl_b32 s45, s{sCT}, 8"); a("s_add_u32 s53, s53, s45")
    VO = T+5
    a(f"v_and_b32 v{VO}, 15, v{L}"); a(f"v_lshlrev_b32 v{VO}, 11, v{VO}"); a(f"v_bfe_u32 v{T+2}, v{L}, 4, 1"); a(f"v_lshl_add_u32 v{VO}, v{T+2}, 5, v{VO}")
    a(f"v_lshrrev_b32 v{T+2}, 5, v{L}"); a(f"v_lshl_add_u32 v{VO}, v{T+2}, 4, v{VO}")
    a.wait("b1"); a("s_barrier")
    for x in g2_reads(0): x()
    XR, RX = 64, 80
    nextA = Cfg.a_prefill
    for st in range(NSTEP):
        main = st < NMAIN
        ms = []
        for c in range(8):
            for t in range(2 if main else 1):
                d = vr(acc2(t, c)); cin = "0" if st == 0 else d
                m = f"{MF} {d}, {ar(B2reg(st,c))}, {ar(A2reg(st,t))}, {cin}"
                if t == 0: ms.append(lambda m=m, c=c: (a.wait(f"r{st}_{c}", ds_max=8), a(m)))
                else: ms.append(m)
        nm = len(ms)
        fill = {}
        ld = []
        if st % 2 == 1:
            sg = (st+1)//2
            if st+1 < NSTEP:
                fill[-1] = [lambda: a.wait(f"b{st+2}"), "s_barrier"]
        tgt = st + 9
        if st >= 3 and tgt < NSTEP: ld += g2_dma(tgt)
        if st == 4: ld.insert(0, lambda: (a.wait("o"), flag_store(a, sMYFL, EV_O)))
        if st == 26: ld.append(lambda: poll_issue(a, VP512, 59, EV_O, "po"))
        if st == 30: fill.setdefault(-1, []).append(lambda: poll_check(a, VP512, 59, EV_O, "po"))
        na = 0
        while nextA < NSTEP and nextA <= st + AR - 1 and na < Cfg.a_per_step and (nextA < 56 or st >= 30) and nextA <= st + Cfg.a_dist:
            ld += g2_aload(nextA); nextA += 1; na += 1
        if st in (65, 66):
            for c in range(4*(st-65), 4*(st-65)+4):
                def f(c=c):
                    if c == 4: a("s_add_u32 s50, s50, 4096")
                    a.vm(f"buffer_store_dwordx4 {vr(acc2(1,c))}, v{VL16}, {sr(S_WS)}, s50 offen offset:{(c&3)*1024} sc1", "ex")
                ld.append(f)
        if st == 70: ld.insert(0, lambda: (a.wait("ex"), flag_store(a, sMYFL2, 0)))
        if st == 72:
            for k in range(4): ld.append(lambda k=k: a.vm(f"buffer_load_dwordx4 {vr(XR+4*k)}, v{VO}, {sr(S_X)}, s53 offen offset:{64*k}", "xr"))
        if st == 75: ld.append(lambda: poll_issue(a, T+4, 52, 0, "px"))
        if st == 78:
            def f():
                poll_check(a, T+4, 52, 0, "px")
                for c in range(8):
                    if c == 4: a("s_add_u32 s51, s51, 4096")
                    a.vm(f"buffer_load_dwordx4 {vr(RX+4*c)}, v{VL16}, {sr(S_WS)}, s51 offen offset:{(c&3)*1024} sc1", f"rx{c}")
            fill.setdefault(-1, []).append(f)
        fill.setdefault(-1, []).append(lambda st=st: a.wait(f"a{st}"))
        if st+1 < NSTEP: spread(fill, g2_reads(st+1), 0, nm)
        if ld: spread(fill, ld, 0, nm)
        merge(a, ms, fill)
        if st == NMAIN-1: a.stamp()
    a.stamp()
    for k in range(4):
        a.wait(f"rx{2*k+1}")
        c0, c1 = acc2(0, 2*k), acc2(0, 2*k+1)
        for i in range(8): a(f"v_add_f32 v{c0+i}, v{c0+i}, v{RX+8*k+i}")
        for r in range(4): a(f"v_permlane16_swap_b32 v{c0+r}, v{c1+r}")
        for d in range(4):
            x = XR+4*k+d
            a(f"v_lshlrev_b32 v{T}, 16, v{x}"); a(f"v_and_b32 v{T+1}, 0xffff0000, v{x}")
            a(f"v_add_f32 v{T}, v{T}, v{c0+2*d}"); a(f"v_add_f32 v{T+1}, v{T+1}, v{c0+2*d+1}")
            a(f"v_cvt_pk_bf16_f32 v{x}, v{T}, v{T+1}")
        a.vm(f"buffer_store_dwordx4 {vr(XR+4*k)}, v{VO}, {sr(S_OUT)}, s53 offen offset:{64*k}")
    if Cfg.stamps:
        a.stamp(); a.wait_all(vm=True); a.stamp()
        srd(a, 44, 0, 256*MB)
        a("s_lshl_b32 s48, s2, 2"); a("s_add_u32 s48, s48, s3"); a("s_lshl_b32 s48, s48, 8"); a(f"s_add_u32 s48, s48, {200*MB}")
        a("s_mov_b64 exec, 1"); a("v_mov_b32 v0, 0")
        for i in range(a.nst):
            a(f"v_mov_b32 v4, s{62+2*i}"); a(f"v_mov_b32 v5, s{63+2*i}")
            a(f"buffer_store_dwordx2 v[4:5], v0, s[44:47], s48 offen offset:{8*i}"); a("s_waitcnt vmcnt(0)")
        print("stamps:", a.nst, file=sys.stderr)
    a.label("Lend")
    a("s_endpgm")
    a.label("Lcode_end")
    return a

def pf_w2(a, half):
    ops = []
    if half == 0:
        def f():
            a("s_lshl_b32 s44, s2, 2"); a("s_add_u32 s44, s44, s3"); a(f"s_mul_i32 s45, s44, {56*128}")
            a(f"v_lshlrev_b32 v{VT}, 7, v{VLANE}")
            a("s_mov_b32 exec_hi, 0xffffff"); a.vm(f"buffer_load_dword v{VT+1}, v{VT}, {sr(S_W2)}, s45 offen"); a("s_mov_b32 exec_hi, -1")
        ops.append(f)
        def g():
            a(f"s_lshl_b32 s45, s44, 11")
            a("s_mov_b64 exec, 0xffff"); a.vm(f"buffer_load_dword v{VT+2}, v{VT}, {sr(S_WO)}, s45 offen"); a("s_mov_b64 exec, -1")
        ops.append(g)
    return ops

Cfg.a_prefill = 12
Cfg.a_per_step = 2
Cfg.a_dist = 12

def text_size(src):
    import subprocess, tempfile, os, re
    d = tempfile.mkdtemp()
    open(d + "/k.s", "w").write(src)
    subprocess.run(["clang", "-x", "assembler", "-target", "amdgcn-amd-amdhsa", "-mcpu=gfx950", "-c", d + "/k.s", "-o", d + "/k.o"], check=True)
    o = subprocess.run(["llvm-objdump", "-h", d + "/k.o"], capture_output=True, text=True).stdout
    return int(re.search(r"\.text\s+([0-9a-f]+)", o).group(1), 16)

def build():
    a = gen()
    lines, n = pad_hazards_fast(a.L)
    hdr = [f"; @launch grid=(256,1,1) block=(256,1,1) lds={LDS_TOTAL}", '.amdgcn_target "amdgcn-amd-amdhsa--gfx950"']
    src = "\n".join(hdr + lines) + "\n" + kernel_desc(NAME, 512, 256)
    size = text_size(src.replace("CODE_BYTES", "0x1000"))
    print(len(lines), "lines,", n, "pads,", size, "bytes", file=sys.stderr)
    return src.replace("CODE_BYTES", str(size - 128))

if __name__ == "__main__":
    out = sys.argv[1] if len(sys.argv) > 1 else "parallel_sum__sliding_block__dense_activation_relu__prompt.s"
    for kv in sys.argv[2:]:
        k, v = kv.split("="); setattr(Cfg, k, int(v))
    open(out, "w").write(build())
```

```python
import sys, math, struct
from asmlib import *

NAME = "parallel_sum__sliding_block__dense_activation_relu__prompt_kernel"
MB = 1 << 20
WS_XF, WS_A2, WS_KF, WS_VF, WS_EX, WS_FL = 0, 4*MB, 22*MB, 26*MB, 30*MB, 38*MB
WS_FL2 = WS_FL + 128*1024
WS_EP = WS_FL + 256*1024
WS_SIZE = 39*MB
OOB = 0x4000000
EV_LN, EV_KV, EV_H, EV_O = 0, 8, 16, 24
QSCALE = (32 ** -0.5) * math.log2(math.e)
def f2u(f): return struct.unpack("<I", struct.pack("<f", f))[0]
def vr(b, n=4): return f"v[{b}:{b+n-1}]"
def ar(b, n=4): return f"a[{b}:{b+n-1}]"
MF = "v_mfma_f32_16x16x32_bf16"

class Cfg:
    stamps = False
    pf_w = True
    pf_w2 = True
    spin_cap = 1 << 18

class Prog(Asm):
    def __init__(self):
        super().__init__()
        self.nvm = 0; self.vm_done = 0; self.nds = 0; self.ds_done = 0; self.tk = {}; self.nlab = 0; self.nst = 0
    def vm(self, text, name=None):
        self(text); self.nvm += 1
        if name: self.tk[name] = ("vm", self.nvm)
    def ds(self, text, name=None):
        self(text); self.nds += 1
        if name: self.tk[name] = ("ds", self.nds)
    def wait(self, *names, ds_max=15):
        v = max([self.tk[n][1] for n in names if self.tk[n][0] == "vm"], default=0)
        d = max([self.tk[n][1] for n in names if self.tk[n][0] == "ds"], default=0)
        parts = []
        if v > self.vm_done:
            k = min(self.nvm - v, 63); parts.append(f"vmcnt({k})"); self.vm_done = self.nvm - k
        if d > self.ds_done:
            k = min(self.nds - d, ds_max); parts.append(f"lgkmcnt({k})"); self.ds_done = self.nds - k
        if parts: self("s_waitcnt " + " ".join(parts))
    def wait_all(self, vm=False, ds=False):
        parts = []
        if vm: parts.append("vmcnt(0)"); self.vm_done = self.nvm
        if ds: parts.append("lgkmcnt(0)"); self.ds_done = self.nds
        self("s_waitcnt " + " ".join(parts))
    def lab(self, p="L"):
        self.nlab += 1; return f"{p}{self.nlab}"
    def stamp(self):
        if not Cfg.stamps: return
        b = 62 + 2*self.nst; self.nst += 1
        assert b + 1 <= 101
        self(f"s_memrealtime s[{b}:{b+1}]"); self.wait_all(ds=True)

def srd(a, d, lo, nbytes):
    a(f"s_mov_b32 s{d}, s{lo}"); a(f"s_mov_b32 s{d+1}, s{lo+1}")
    a(f"s_mov_b32 s{d+2}, {nbytes}"); a(f"s_mov_b32 s{d+3}, 0x20000")

S_X, S_WQKV, S_W1, S_WS, S_W2, S_WO, S_OUT = 4, 8, 12, 16, 20, 24, 28
sRB, sHD, sMYFL, sPSTAR = 32, 33, 34, 35
sTAG = 36
sRT, sCT, sKH, sMYFL2 = 38, 39, 40, 41
def sr(b): return f"s[{b}:{b+3}]"
VADDR, VDMA = 208, 226
VL16, VLANE, VP128, VP512, VONE = 233, 234, 235, 236, 237
VTAG = 238
V2DMA = 240
V2A = 244
VPOLL = 246
VT = 248
RING1 = 4096; STG = 28672; NS = 4
LDS_V = 0; LDS_K = 131072; LDS_LN = 131072
RING2 = 32768; STG2 = 16384; NS2 = 6
LDS_TOTAL = 163840

def wave_allreduce(a, vs, tmps, op):
    for mod in ("quad_perm:[1,0,3,2]", "quad_perm:[2,3,0,1]", "row_half_mirror", "row_mirror"):
        for v in vs: a(f"{op}_dpp v{v}, v{v}, v{v} {mod} row_mask:0xf bank_mask:0xf")
    rowgroup_reduce(a, vs, tmps, op)
def rowgroup_reduce(a, vs, tmps, op):
    for sw in ("v_permlane16_swap_b32", "v_permlane32_swap_b32"):
        for v, t in zip(vs, tmps): a(f"v_mov_b32 v{t}, v{v}")
        for v, t in zip(vs, tmps): a(f"{sw} v{v}, v{t}")
        for v, t in zip(vs, tmps): a(f"{op} v{v}, v{v}, v{t}")
def round_bf16(a, vs):
    for v in vs: a(f"v_cvt_pk_bf16_f32 v{v}, v{v}, v{v}")
    for v in vs: a(f"v_lshlrev_b32 v{v}, 16, v{v}")

def flag_store(a, sbase, ev):
    a.vm(f"buffer_store_dwordx2 {vr(VTAG,2)}, v{VONE}, {sr(S_WS)}, s{sbase} offen offset:{ev} sc1")
def poll_issue(a, voff, sbase, ev, name):
    a.vm(f"buffer_load_dwordx2 {vr(VPOLL,2)}, v{voff}, {sr(S_WS)}, s{sbase} offen offset:{ev} sc1", name)
def poll_check(a, voff, sbase, ev, name):
    ok = a.lab("Lok"); lp = a.lab("Lsp")
    a.wait(name)
    a(f"v_cmp_ne_u64 vcc, s[{sTAG}:{sTAG+1}], {vr(VPOLL,2)}")
    a("s_nop 1")
    a(f"s_cbranch_vccz {ok}")
    a(f"s_mov_b32 s49, {Cfg.spin_cap}")
    a.label(lp)
    a(f"buffer_load_dwordx2 {vr(VPOLL,2)}, v{voff}, {sr(S_WS)}, s{sbase} offen offset:{ev} sc1")
    a("s_sub_u32 s49, s49, 1")
    a("s_waitcnt vmcnt(0)")
    a(f"v_cmp_ne_u64 vcc, s[{sTAG}:{sTAG+1}], {vr(VPOLL,2)}")
    a("s_cmp_eq_u32 s49, 0"); a(f"s_cbranch_scc1 {ok}")
    a(f"s_cbranch_vccnz {lp}")
    a.label(ok)

def merge(a, ms, fill):
    def run(x):
        if callable(x): x()
        else: a(x)
    for x in fill.get(-1, []): run(x)
    for i, m in enumerate(ms):
        run(m)
        for x in fill.get(i, []): run(x)
def spread(fill, items, lo, hi):
    n = len(items)
    for i, x in enumerate(items):
        g = lo + int(i*(hi-lo)/n)
        fill.setdefault(g, []).append(x)
def spread_free(fill, items, lo, hi):
    n = len(items); last = lo
    for i, x in enumerate(items):
        want = lo + int((i+0.5)*(hi-lo)/n)
        cand = [g for g in range(max(last, want-2), min(hi, want+3))] or [min(hi-1, last)]
        g = min(cand, key=lambda g: (len(fill.get(g, [])), abs(g-want)))
        fill.setdefault(g, []).append(x); last = g

def acc(f, t): return (f*4 + t)*4
def Areg(s, u, t): return (s % NS)*32 + (u*4 + t)*4
def Bslot(k): return 128 + (k % 26)*4
sWQ, sW1o, sA0, sLW = 50, 51, 52, 56

def g1_read(a, n, f, slot):
    s, u = divmod(n, 2); rs = s % NS
    base = (rs & 1)*STG + u*14336; vs = VADDR + 9*(rs >> 1)
    out = []
    for h in range(2):
        if f < 6: va, off = vs + (f & 1), base + (f >> 1)*1024 + h*256
        else: va, off = vs + 2 + (f - 6), base + h*1024
        out.append(lambda d=Bslot(slot)+2*h, va=va, off=off: a.ds(f"ds_read_b64_tr_b16 {ar(d,2)}, v{va} offset:{off}"))
    return out
def g1_dma(a, s):
    slot = s % NS; ops = []
    ops.append(lambda: a(f"s_add_u32 m0, s{sLW}, {slot*STG}"))
    for m in range(3):
        def f(m=m):
            a.vm(f"buffer_load_dwordx4 v{VDMA+m}, {sr(S_WQKV)}, s{sWQ} offen offset:{m*1024} lds")
            if m == 2: a(f"s_add_u32 m0, s{sLW}, {slot*STG+3072}"); a(f"s_add_u32 s{sWQ}, s{sWQ}, {64*6144}")
        ops.append(f)
    for j in range(4):
        def f(j=j):
            a.vm(f"buffer_load_dwordx4 v{VDMA+3+j}, {sr(S_W1)}, s{sW1o} offen offset:{j*1024} lds", f"dma{s}")
            if j == 3: a(f"s_add_u32 s{sW1o}, s{sW1o}, {64*7168}")
        ops.append(f)
    return ops
def g1_aload(a, s):
    ops = []
    for u in range(2):
        for t in range(4):
            def f(u=u, t=t):
                a.vm(f"buffer_load_dwordx4 {ar(Areg(s,u,t))}, v{VL16}, {sr(S_WS)}, s{sA0+t} offen offset:{u*1024} sc1", f"A{s}_{u}")
                if u == 1: a(f"s_add_u32 s{sA0+t}, s{sA0+t}, 2048")
            ops.append(f)
    return ops
def g1_mfma(n, f, slot):
    s, u = divmod(n, 2); out = []
    for t in range(4):
        c = vr(acc(f, t)); x = ar(Areg(s, u, t)); w = ar(Bslot(slot)); cin = "0" if n == 0 else c
        out.append(f"{MF} {c}, {x}, {w}, {cin}" if f in (4, 5) else f"{MF} {c}, {w}, {x}, {cin}")
    return out

def gen():
    a = Prog()
    kernel_header(a, NAME)
    a("s_cmp_ge_u32 s2, 256"); a("s_cbranch_scc1 Lend")
    a("s_load_dwordx16 s[44:59], s[0:1], 0")
    a("s_load_dwordx2 s[60:61], s[0:1], 64")
    if Cfg.stamps: a("s_memrealtime s[62:63]"); a.nst = 1
    a(f"v_and_b32 v{VLANE}, 63, v0"); a("v_lshrrev_b32 v1, 6, v0"); a("v_readfirstlane_b32 s3, v1")
    L = VLANE
    a(f"v_lshlrev_b32 v{VL16}, 4, v{L}")
    a("s_getpc_b64 s[28:29]"); a.label("Lpc0"); a("s_and_b32 s29, s29, 0xffff"); a("s_mov_b32 s30, CODE_BYTES"); a("s_mov_b32 s31, 0x20000")
    a("s_lshr_b32 s42, s2, 3"); a("s_lshl_b32 s42, s42, 2"); a("s_add_u32 s42, s42, s3"); a("s_lshl_b32 s42, s42, 9")
    a(f"v_lshlrev_b32 v1, 7, v{L}")
    a("s_mov_b64 exec, 0xf"); a.vm("buffer_load_dword v2, v1, s[28:31], s42 offen"); a("s_mov_b64 exec, -1")
    a(f"s_lshr_b32 s42, s2, 3"); a(f"s_and_b32 s{sRB}, s42, 3"); a(f"s_lshr_b32 s{sHD}, s42, 2")
    a("s_and_b32 s43, s2, 1"); a("s_lshl_b32 s43, s43, 2"); a(f"s_add_u32 s{sRB}, s{sRB}, s43")
    a("s_and_b32 s43, s2, 6"); a("s_lshl_b32 s43, s43, 2"); a(f"s_add_u32 s{sHD}, s{sHD}, s43")
    a(f"s_and_b32 s{sKH}, s2, 1")
    a(f"s_lshr_b32 s{sRT}, s42, 2"); a("s_and_b32 s43, s2, 2"); a("s_lshl_b32 s43, s43, 2"); a(f"s_add_u32 s{sRT}, s{sRT}, s43")
    a(f"s_and_b32 s{sCT}, s42, 3"); a("s_and_b32 s43, s2, 4"); a(f"s_add_u32 s{sCT}, s{sCT}, s43")
    a(f"s_lshl_b32 s42, s{sRB}, 5"); a(f"s_add_u32 s42, s42, s{sHD}")
    a("s_lshl_b32 s42, s42, 2"); a("s_add_u32 s42, s42, s3")
    a(f"s_lshl_b32 s{sMYFL}, s42, 7"); a(f"s_add_u32 s{sMYFL}, s{sMYFL}, {WS_FL}")
    a("s_lshl_b32 s43, s42, 12")
    a("v_mov_b32 v3, 0")
    a("s_waitcnt lgkmcnt(0)")
    srd(a, S_X, 44, 2048*2048); srd(a, S_WS, 60, WS_SIZE)
    for r in range(2):
        for h in range(2):
            a.vm(f"buffer_load_dwordx4 {vr(8+r*8+h*4)}, v{VL16}, {sr(S_X)}, s43 offen offset:{r*2048+h*1024}", "x")
    a(f"s_mov_b32 s42, {WS_EP}")
    a.vm(f"buffer_load_dwordx2 {vr(VTAG,2)}, v3, {sr(S_WS)}, s42 offen sc1", "epoch")
    srd(a, S_WQKV, 46, 1024*6144); srd(a, S_W1, 52, 1024*7168); srd(a, S_W2, 54, 3584*2048); srd(a, S_WO, 48, 1024*2048)
    srd(a, S_OUT, 56, 2048*2048)
    if Cfg.stamps: a("s_mov_b32 s0, s60"); a("s_mov_b32 s1, s61")
    T = VT
    a(f"v_lshrrev_b32 v{T}, 2, v{L}"); a("s_lshl_b32 s44, s3, 4"); a(f"v_add_u32 v{T}, s44, v{T}")
    a(f"v_mul_u32_u24 v{T}, 6144, v{T}")
    a(f"v_lshrrev_b32 v{T+1}, 5, v{L}"); a(f"v_lshlrev_b32 v{T+1}, 1, v{T+1}"); a(f"v_and_b32 v{T+2}, 3, v{L}"); a(f"v_xor_b32 v{T+1}, v{T+1}, v{T+2}")
    a(f"v_lshl_add_u32 v{T}, v{T+1}, 4, v{T}")
    a(f"s_lshl_b32 s45, s{sHD}, 6"); a(f"v_add_u32 v{VDMA}, s45, v{T}")
    a(f"v_add_u32 v{VDMA+1}, 1024, v{VDMA}"); a(f"v_add_u32 v{VDMA+2}, 2048, v{VDMA}")
    a(f"v_lshrrev_b32 v{T}, 4, v{L}")
    a(f"v_add_u32 v{T+1}, s44, v{T}"); a(f"v_mul_u32_u24 v{T+1}, 7168, v{T+1}")
    a(f"s_mul_i32 s45, s{sHD}, 224"); a(f"s_and_b32 s46, s{sHD}, 1"); a("s_lshl_b32 s47, s46, 5"); a("s_sub_u32 s45, s45, s47")
    a(f"v_add_u32 v{T+1}, s45, v{T+1}")
    a(f"v_and_b32 v{T+2}, 1, v{L}"); a(f"v_lshl_add_u32 v{T+1}, v{T+2}, 4, v{T+1}")
    a(f"v_bfe_u32 v{T+2}, v{L}, 1, 3"); a(f"v_xor_b32 v{T+2}, v{T+2}, v{T}")
    for j in range(4):
        if j == 2: a(f"v_xor_b32 v{T+2}, 4, v{T+2}")
        a(f"v_lshl_add_u32 v{VDMA+3+j}, v{T+2}, 5, v{T+1}")
        if j: a(f"v_add_u32 v{VDMA+3+j}, {j*(4*7168-1024)}, v{VDMA+3+j}")
    a(f"s_mov_b32 s{sWQ}, 0"); a(f"s_mov_b32 s{sW1o}, 0"); a(f"s_mul_i32 s{sLW}, s3, 7168"); a(f"s_add_u32 s{sLW}, s{sLW}, {RING1}")
    for f in g1_dma(a, 0): f()
    a(f"v_and_b32 v{T}, 31, v{L}"); a(f"v_lshlrev_b32 v{VP128}, 7, v{T}"); a(f"v_lshlrev_b32 v{VP512}, 9, v{T}")
    a(f"v_lshlrev_b32 v{VONE}, 26, v{L}")
    a(f"v_min_u32 v{VONE}, {OOB}, v{VONE}")
    a(f"v_lshrrev_b32 v{T}, 5, v{L}"); a(f"v_mul_u32_u24 v{T}, 7168, v{T}")
    a(f"v_and_b32 v{T+1}, 3, v{L}"); a(f"v_lshl_add_u32 v{T}, v{T+1}, 3, v{T}"); a(f"v_add_u32 v{T}, {RING1}, v{T}")
    a(f"v_bfe_u32 v{T+1}, v{L}, 4, 1"); a(f"v_bfe_u32 v{T+2}, v{L}, 2, 2")
    a(f"v_lshl_add_u32 v{T+3}, v{T+1}, 3, v{T+2}")
    a(f"v_lshl_add_u32 v{T+4}, v{T+3}, 6, v{T}")
    a(f"v_lshl_add_u32 v{VADDR}, v{T+1}, 5, v{T+4}")
    a(f"v_xor_b32 v{T+5}, 1, v{T+1}"); a(f"v_lshl_add_u32 v{VADDR+1}, v{T+5}, 5, v{T+4}")
    a(f"v_lshl_add_u32 v{T+4}, v{T+3}, 8, v{T}"); a(f"v_add_u32 v{T+4}, 3072, v{T+4}")
    a(f"v_lshl_add_u32 v{T+5}, v{T+1}, 2, v{T+2}")
    a("s_lshl_b32 s47, s46, 1")
    for f in range(7):
        if f < 6: a(f"s_add_u32 s48, s47, {f}")
        else: a("s_mul_i32 s48, s46, 5"); a("s_sub_u32 s48, 6, s48")
        a(f"v_xor_b32 v{T+6}, s48, v{T+5}"); a(f"v_lshl_add_u32 v{VADDR+2+f}, v{T+6}, 5, v{T+4}")
    for i in range(9): a(f"v_add_u32 v{VADDR+9+i}, {2*STG}, v{VADDR+i}")
    if Cfg.pf_w:
        a(f"v_lshlrev_b32 v4, 7, v{L}")
        a("s_lshl_b32 s44, s2, 2"); a("s_add_u32 s44, s44, s3")
        a(f"s_mul_i32 s45, s44, {36*128}"); a(f"s_add_u32 s45, s45, {256*6144}")
        a(f"s_mul_i32 s44, s44, {42*128}"); a(f"s_add_u32 s44, s44, {256*7168}")
        a("s_mov_b32 exec_hi, 0xf"); a.vm(f"buffer_load_dword v5, v4, {sr(S_WQKV)}, s45 offen")
        a("s_mov_b32 exec_hi, 0x3ff"); a.vm(f"buffer_load_dword v6, v4, {sr(S_W1)}, s44 offen")
        a("s_mov_b32 exec_hi, -1")
    a.wait("x", "epoch")
    a.stamp()
    F = 64
    a("v_mov_b32 v30, 0x3f803f80"); a("v_mov_b32 v24, 0"); a("v_mov_b32 v25, 0")
    for d in range(8):
        for r in range(2): a(f"v_dot2c_f32_bf16 v{24+r}, v{8+r*8+d}, v30")
    a(f"v_add_co_u32 v{VTAG}, vcc, 0x9e3779b9, v{VTAG}"); a(f"v_mov_b32 v31, 0x7f4a7c15")
    a(f"v_addc_co_u32 v{VTAG+1}, vcc, v{VTAG+1}, v31, vcc")
    for r in range(2):
        for d in range(8):
            a(f"v_lshlrev_b32 v{F+r*16+2*d}, 16, v{8+r*8+d}"); a(f"v_and_b32 v{F+r*16+2*d+1}, 0xffff0000, v{8+r*8+d}")
    a(f"v_readfirstlane_b32 s{sTAG}, v{VTAG}"); a(f"v_readfirstlane_b32 s{sTAG+1}, v{VTAG+1}")
    wave_allreduce(a, [24, 25], [28, 29], "v_add_f32")
    for r in range(2): a(f"v_mul_f32 v{24+r}, {f2u(1/1024):#x}, v{24+r}")
    for r in range(2): a(f"v_cvt_pk_bf16_f32 v{32+2*r}, v{24+r}, v{24+r}")
    for r in range(2): a(f"v_lshlrev_b32 v{32+2*r}, 16, v{32+2*r}")
    for r in range(2): a(f"v_sub_f32 v{24+r}, v{24+r}, v{32+2*r}")
    for r in range(2):
        for d in range(8):
            x = F+r*16+2*d
            a(f"v_pk_add_f32 {vr(x,2)}, {vr(x,2)}, {vr(32+2*r,2)} op_sel_hi:[1,0] neg_lo:[0,1] neg_hi:[0,1]")
    for r in range(2): a(f"v_pk_mul_f32 {vr(36+2*r,2)}, {vr(F+r*16,2)}, {vr(F+r*16,2)}")
    for d in range(1, 8):
        for r in range(2):
            x = F+r*16+2*d
            a(f"v_pk_fma_f32 {vr(36+2*r,2)}, {vr(x,2)}, {vr(x,2)}, {vr(36+2*r,2)}")
    for r in range(2): a(f"v_add_f32 v{26+r}, v{36+2*r}, v{37+2*r}")
    for r in range(2):
        for d in range(8): a(f"v_cvt_pk_bf16_f32 v{8+r*8+d}, v{F+r*16+2*d}, v{F+r*16+2*d+1}")
    wave_allreduce(a, [26, 27], [28, 29], "v_add_f32")
    for r in range(2):
        for d in range(8):
            a(f"v_lshlrev_b32 v{F+r*16+2*d}, 16, v{8+r*8+d}"); a(f"v_and_b32 v{F+r*16+2*d+1}, 0xffff0000, v{8+r*8+d}")
    for r in range(2): a(f"v_mul_f32 v{26+r}, {f2u(1/1024):#x}, v{26+r}")
    for r in range(2): a(f"v_fma_f32 v{26+r}, -v{24+r}, v{24+r}, v{26+r}")
    for r in range(2): a(f"v_max_f32 v{26+r}, 0, v{26+r}")
    round_bf16(a, [26, 27])
    for r in range(2): a(f"v_add_f32 v{26+r}, {f2u(1e-5):#x}, v{26+r}")
    round_bf16(a, [26, 27])
    for r in range(2): a(f"v_sqrt_f32 v{26+r}, v{26+r}")
    round_bf16(a, [26, 27])
    for r in range(2): a(f"v_rcp_f32 v{32+2*r}, v{26+r}")
    a(f"v_and_b32 v40, 7, v{L}"); a("s_lshl_b32 s44, s3, 1")
    for r in range(2):
        a(f"s_add_u32 s45, s44, {r}")
        a(f"v_xor_b32 v{41+r}, s45, v40"); a(f"v_lshlrev_b32 v{41+r}, 4, v{41+r}"); a(f"v_lshl_add_u32 v{41+r}, v{L}, 7, v{41+r}")
        a(f"v_add_u32 v{41+r}, {LDS_LN}, v{41+r}")
    for r in range(2):
        for h in range(2):
            for d in range(4*h, 4*h+4):
                x = F+r*16+2*d
                a(f"v_pk_mul_f32 {vr(x,2)}, {vr(x,2)}, {vr(32+2*r,2)} op_sel_hi:[1,0]")
            for d in range(4*h, 4*h+4):
                x = F+r*16+2*d
                a(f"v_cvt_pk_bf16_f32 v{8+r*8+d}, v{x}, v{x+1}")
            a.ds(f"ds_write_b128 v{41+r}, {vr(8+r*8+h*4)} offset:{h*8192}")
    a(f"v_lshrrev_b32 v43, 3, v{L}")
    a("v_xor_b32 v44, v43, v40"); a("v_lshlrev_b32 v44, 4, v44"); a("v_lshl_add_u32 v44, v43, 7, v44")
    a("s_lshl_b32 s44, s3, 12"); a(f"s_add_u32 s44, s44, {LDS_LN}"); a("v_add_u32 v44, s44, v44")
    a("v_lshlrev_b32 v45, 8, v43"); a("v_lshl_add_u32 v45, v40, 4, v45")
    a(f"s_lshl_b32 s44, s{sRB}, 4"); a(f"s_lshr_b32 s45, s{sHD}, 1"); a("s_add_u32 s44, s44, s45"); a("s_lshl_b32 s44, s44, 15")
    a("s_lshl_b32 s45, s46, 7"); a("s_add_u32 s44, s44, s45"); a("s_lshl_b32 s45, s3, 13"); a("s_add_u32 s44, s44, s45"); a("s_add_u32 s45, s44, 4096")
    a.wait_all(ds=True); a("s_barrier")
    for j in range(4): a.ds(f"ds_read_b128 {vr(48+4*j)}, v44 offset:{j*1024}", f"ln{j}")
    for j in range(4):
        a.wait(f"ln{j}")
        a.vm(f"buffer_store_dwordx4 {vr(48+4*j)}, v45, {sr(S_WS)}, s{44+j//2} offen offset:{(j&1)*2048} sc1", "xf")
    a.stamp()
    for f in g1_dma(a, 1): f()
    a(f"v_lshrrev_b32 v{T}, 4, v{L}")
    a(f"v_bfe_u32 v{T+1}, v{L}, 1, 3"); a(f"v_xor_b32 v{T+1}, v{T+1}, v{T}")
    a(f"v_and_b32 v{T+2}, 1, v{L}"); a(f"v_lshlrev_b32 v{T+2}, 4, v{T+2}")
    a(f"s_lshl_b32 s44, s{sCT}, 8"); a(f"v_add_u32 v{T+2}, s44, v{T+2}")
    a(f"v_lshl_add_u32 v{T+2}, v{T}, 11, v{T+2}")
    a(f"v_lshl_add_u32 v{T+3}, v{T+1}, 5, v{T+2}")
    a(f"v_xor_b32 v{T+1}, 4, v{T+1}"); a(f"v_lshl_add_u32 v{T+4}, v{T+1}, 5, v{T+2}")
    a("s_lshl_b32 s44, s3, 14"); a(f"v_add_u32 v{V2DMA}, s44, v{T+3}")
    a(f"s_add_u32 s44, s44, {4*2048-1024}"); a(f"v_add_u32 v{V2DMA+1}, s44, v{T+4}")
    a("s_and_b32 s44, s3, 1"); a("s_lshl_b32 s44, s44, 4"); a("s_lshr_b32 s45, s3, 1"); a("s_lshl_b32 s45, s45, 2"); a("s_add_u32 s44, s44, s45")
    a("s_lshl_b32 s44, s44, 11"); a(f"v_add_u32 v{V2DMA+2}, s44, v{T+3}")
    a(f"s_add_u32 s44, s44, {8*2048-1024}"); a(f"v_add_u32 v{V2DMA+3}, s44, v{T+4}")
    a(f"s_lshl_b32 s44, s{sKH}, 10"); a(f"v_add_u32 v{V2A}, s44, v{VL16}"); a("s_xor_b32 s44, s44, 1024"); a(f"v_add_u32 v{V2A+1}, s44, v{VL16}")
    a(f"s_lshl_b32 s44, s{sRB}, 2"); a("s_add_u32 s44, s44, s3"); a(f"s_lshl_b32 s{sA0}, s44, 17")
    for t in range(1, 4): a(f"s_add_u32 s{sA0+t}, s{sA0}, {t*32768}")
    a("s_lshl_b32 s57, s44, 12"); a(f"s_add_u32 s57, s57, {WS_FL}")
    a.wait("xf")
    flag_store(a, sMYFL, EV_LN)
    a.stamp()
    for f in g1_dma(a, 2): f()
    poll_issue(a, VP128, 57, EV_LN, "pl")
    poll_check(a, VP128, 57, EV_LN, "pl")
    a.stamp()
    for f in g1_aload(a, 0): f()
    for f in g1_aload(a, 1): f()
    a.wait("dma0"); a("s_barrier")
    for f in range(13):
        for x in g1_read(a, 0, f, f): x()
    for f in g1_dma(a, 3): f()
    a.wait_all(ds=True); a.wait("A0_0")
    a.stamp()
    TS = 2
    FORD = [2, 3, 4, 5, 6, 7, 8, 9, 10, 11, 12, 0, 1]
    groups = [(n, f) for n in range(32-2*TS) for f in range(13)] + [(n, f) for f in FORD for n in range(32-2*TS, 32)]
    def batch_ms(b): return [m for k in range(13*b, 13*b+13) for m in g1_mfma(*groups[k], k)]
    def batch_reads(b): return [x for k in range(13*b, 13*b+13) for x in g1_read(a, *groups[k], k)]
    for b in range(32-2*TS):
        s, u = divmod(b, 2)
        fill = {}
        spread(fill, batch_reads(b+1), 0, 44)
        if u == 0:
            ld = g1_aload(a, s+2) if s+2 < 16 else []
            spread_free(fill, ld, 0, 52)
            merge(a, batch_ms(b), fill)
            if s+1 < 16-TS: a.wait_all(ds=True); a.wait(f"dma{s+1}", f"A{s}_1")
            else: a.wait_all(ds=True); a.wait("dma15", f"A{s}_1")
            a("s_barrier")
        else:
            ld = g1_dma(a, s+NS) if s+NS < 16 else []
            if Cfg.pf_w2 and s in (12, 13): ld = pf_w2(a, s-12)
            spread_free(fill, ld, 0, 52)
            merge(a, batch_ms(b), fill)
            a.wait_all(ds=True)
            if s+1 < 16-TS: a.wait(f"A{s+1}_0")
            else: a.wait("A15_1")
    a.stamp()
    def cvt4(f0, t0, f1, t1):
        d = acc(f0, t0); b = acc(f1, t1)
        return [f"v_cvt_pk_bf16_f32 v{d}, v{d}, v{d+1}", f"v_cvt_pk_bf16_f32 v{d+1}, v{d+2}, v{d+3}",
                f"v_cvt_pk_bf16_f32 v{d+2}, v{b}, v{b+1}", f"v_cvt_pk_bf16_f32 v{d+3}, v{b+2}, v{b+3}"]
    def relu4(d): return [f"v_pk_max_i16 v{d+i}, v{d+i}, 0" for i in range(4)]
    ms = [m for b in range(32-2*TS, 32) for m in batch_ms(b)]
    fill = {}
    for b in range(32-2*TS, 31):
        o = 52*(b-(32-2*TS))
        spread(fill, batch_reads(b+1), o, o+44)
        fill.setdefault(o+51, []).append(lambda: a.wait_all(ds=True))
    G = 8*TS*2
    pre = [f"s_lshl_b32 s44, s{sHD}, 17", f"s_lshl_b32 s45, s{sRB}, 14", "s_add_u32 s44, s44, s45", "s_lshl_b32 s45, s3, 12", "s_add_u32 s44, s44, s45",
           f"s_add_u32 s50, s44, {WS_KF}", f"s_add_u32 s51, s44, {WS_VF}",
           f"s_add_u32 s45, s45, {LDS_K+16384}", f"v_add_u32 v{T}, s45, v{VL16}", f"v_add_u32 v{T+1}, {(LDS_V-LDS_K) & 0xffffffff}, v{T}",
           f"s_lshl_b32 s44, s{sRB}, 1", "s_lshr_b32 s45, s3, 1", "s_add_u32 s44, s44, s45", f"s_mul_i32 s44, s44, {144*8192}",
           "s_and_b32 s45, s3, 1", "s_lshl_b32 s45, s45, 12", "s_add_u32 s44, s44, s45", f"s_add_u32 s44, s44, {WS_A2}",
           f"s_lshr_b32 s45, s{sHD}, 1", "s_mul_i32 s45, s45, 7", f"s_and_b32 s46, s{sHD}, 1", "s_lshl_b32 s47, s46, 2", "s_add_u32 s47, s47, s45",
           "s_lshl_b32 s47, s47, 13", "s_add_u32 s52, s44, s47",
           "s_add_u32 s45, s45, 3", "s_lshl_b32 s45, s45, 13", "s_lshl_b32 s46, s46, 9", "s_add_u32 s45, s45, s46", "s_add_u32 s53, s44, s45",
           f"s_add_u32 s45, s{sHD}, 112", "s_lshl_b32 s45, s45, 13", "s_add_u32 s54, s44, s45",
           f"v_and_b32 v{T+2}, 15, v{L}", f"v_lshlrev_b32 v{T+2}, 4, v{T+2}", f"v_bfe_u32 v{T+3}, v{L}, 4, 1", f"v_lshl_add_u32 v{T+2}, v{T+3}, 10, v{T+2}",
           f"v_lshrrev_b32 v{T+3}, 5, v{L}", f"v_lshl_add_u32 v{T+2}, v{T+3}, 8, v{T+2}"]
    spread(fill, pre, 0, G)
    it = []
    for t in range(4):
        it += cvt4(2, t, 3, t)
        it.append(lambda t=t: a.vm(f"buffer_store_dwordx4 {vr(acc(2,t))}, v{VL16}, {sr(S_WS)}, s50 offen offset:{t*1024} sc1"))
        it.append(lambda t=t: a.ds(f"ds_write_b128 v{T}, {vr(acc(2,t))} offset:{t*1024}"))
    spread(fill, it, G+4, 2*G+2)
    it = []
    for p in range(2):
        for j in range(2):
            it += cvt4(4+j, 2*p, 4+j, 2*p+1)
            it.append(lambda p=p, j=j: a.vm(f"buffer_store_dwordx4 {vr(acc(4+j,2*p))}, v{VL16}, {sr(S_WS)}, s51 offen offset:{p*2048+j*1024} sc1", "kv"))
            it.append(lambda p=p, j=j: a.ds(f"ds_write_b128 v{T+1}, {vr(acc(4+j,2*p))} offset:{p*2048+j*1024}"))
    spread(fill, it, 2*G+4, 3*G-4)
    for b in range(3):
        it = []
        for t in range(4):
            it += cvt4(6+2*b, t, 7+2*b, t) + relu4(acc(6+2*b, t))
            def st(b=b, t=t):
                a.vm(f"buffer_store_dwordx4 {vr(acc(6+2*b,t))}, v{VL16}, {sr(S_WS)}, s52 offen offset:{t*1024} sc1")
                if t == 3: a("s_add_u32 s52, s52, 8192")
            it.append(st)
        spread(fill, it, (3+b)*G+4, (4+b)*G+4 if b < 2 else 6*G-4)
    it = []
    for p in range(2):
        d = acc(12, 2*p)
        it += cvt4(12, 2*p, 12, 2*p+1) + relu4(d) + [f"v_permlane16_swap_b32 v{d}, v{d+2}", f"v_permlane16_swap_b32 v{d+1}, v{d+3}"]
        it.append(lambda p=p, d=d: a.vm(f"buffer_store_dwordx4 {vr(d)}, v{T+2}, {sr(S_WS)}, s53 offen offset:{p*2048} sc1", "h"))
    spread(fill, it, 6*G-4, 6*G+G//2)
    fill.setdefault(4*G+G//2, []).extend([lambda: a.wait("kv"), lambda: flag_store(a, sMYFL, EV_KV)])
    merge(a, ms, fill)
    a.stamp()
    a(f"s_sub_u32 s55, s{sMYFL}, {32*4*128}")
    a(f"v_mov_b32 v{T+4}, 0")
    a(f"s_cmp_eq_u32 s{sRB}, 0"); a(f"s_cselect_b32 s55, s{sMYFL}, s55")
    a(f"s_cselect_b32 s44, {OOB}, 0"); a("s_add_u32 s50, s50, s44"); a("s_add_u32 s51, s51, s44")
    a("s_lshl_b32 s44, s3, 1"); a(f"s_sub_u32 s44, 8, s44"); a(f"s_cmp_eq_u32 s{sRB}, 0"); a(f"s_cselect_b32 s{sPSTAR}, s44, 99")
    poll_issue(a, T+4, 55, EV_KV, "pk")
    a(f"s_mov_b32 s44, {f2u(QSCALE):#x}")
    for t in range(4):
        for f in range(2):
            for i in range(4): a(f"v_mul_f32 v{acc(f,t)+i}, s44, v{acc(f,t)+i}")
        for x in cvt4(0, t, 1, t): a(x)
    Q = 0
    O, Lr, M, C, CD, BL, BU, S, P, TT = 32, 64, 80, 84, 100, 116, 120, 128, 160, 176
    KA, VA, ONES = 192, 208, 232
    a(f"v_and_b32 v{TT}, 15, v{L}"); a(f"v_lshrrev_b32 v{TT+1}, 4, v{L}"); a(f"v_lshlrev_b32 v{TT+1}, 2, v{TT+1}")
    a(f"v_mov_b32 v{TT+2}, {f2u(-1e30):#x}"); a(f"v_mov_b32 v{TT+4}, 0x3f803f80")
    for r in range(4):
        a(f"v_add_u32 v{TT+3}, {r}, v{TT+1}"); a(f"v_cmp_le_u32 vcc, v{TT+3}, v{TT}")
        a(f"v_accvgpr_write_b32 a{ONES+r}, v{TT+4}"); a(f"v_mov_b32 v{M+r}, v{TT+2}")
        a(f"v_cndmask_b32_e64 v{BL+r}, v{TT+2}, 0, vcc"); a(f"v_cndmask_b32_e64 v{BU+r}, 0, v{TT+2}, vcc")
    VK, VV = TT+5, TT+6
    a("s_lshl_b32 s44, s3, 12"); a(f"v_add_u32 v{VV}, s44, v{VL16}"); a(f"v_add_u32 v{VK}, {LDS_K}, v{VV}")
    poll_check(a, T+4, 55, EV_KV, "pk")
    a("s_sub_u32 s50, s50, 16384"); a("s_sub_u32 s51, s51, 16384")
    a("s_lshl_b32 s44, s3, 12"); a(f"s_add_u32 m0, s44, {LDS_K}")
    for j in range(4): a.vm(f"buffer_load_dwordx4 v{VL16}, {sr(S_WS)}, s50 offen offset:{j*1024} sc1 lds", "pk")
    a(f"s_add_u32 m0, s44, {LDS_V}")
    for j in range(4): a.vm(f"buffer_load_dwordx4 v{VL16}, {sr(S_WS)}, s51 offen offset:{j*1024} sc1 lds", "pv")
    a.wait("h"); flag_store(a, sMYFL, EV_H)
    a(f"s_cmp_lg_u32 s{sMYFL}, {WS_FL}"); a("s_cbranch_scc1 Lnoep")
    a(f"v_lshlrev_b32 v{TT+7}, 9, v{L}")
    for k in range(4):
        a(f"s_mov_b32 s45, {WS_FL + k*64*512}")
        a(f"buffer_load_dwordx2 {vr(VPOLL,2)}, v{TT+7}, {sr(S_WS)}, s45 offen offset:{EV_LN} sc1"); a("s_waitcnt vmcnt(0)")
        a.tk["ep"] = ("vm", 0)
        poll_check(a, TT+7, 45, EV_LN, "ep")
    a(f"s_mov_b32 s45, {WS_EP}")
    a(f"buffer_store_dwordx2 {vr(VTAG,2)}, v{VONE}, {sr(S_WS)}, s45 offen sc1"); a("s_waitcnt vmcnt(0)")
    a.label("Lnoep")
    a("s_lshl_b32 s56, s3, 11"); a(f"s_add_u32 s56, s56, {RING2}")
    a(f"s_mul_i32 s57, s{sKH}, {56*65536}")
    a(f"s_mul_i32 s58, s{sRT}, 144"); a(f"s_mul_i32 s44, s{sKH}, 56"); a("s_add_u32 s58, s58, s44"); a("s_lshl_b32 s58, s58, 13")
    a("s_lshl_b32 s44, s3, 11"); a("s_add_u32 s58, s58, s44"); a(f"s_add_u32 s58, s58, {WS_A2}")
    a(f"s_lshr_b32 s44, s{sRT}, 1"); a("s_lshl_b32 s44, s44, 7"); a(f"s_and_b32 s45, s{sRT}, 1"); a("s_lshl_b32 s45, s45, 1"); a("s_add_u32 s44, s44, s45")
    a("s_lshr_b32 s45, s3, 1"); a("s_add_u32 s44, s44, s45"); a("s_lshl_b32 s59, s44, 7"); a(f"s_add_u32 s59, s59, {WS_FL}")
    a.wait("pv"); a.wait_all(ds=True); a("s_barrier")
    a.stamp()
    NSTEP = 80; NMAIN = 64; AR = 24
    def g2_dma(st):
        ops = []
        shared = st < 56 and st % 7 == 3
        buf = S_W2 if st < 56 else S_WO
        ldsoff = (st % (2*NS2))*8192
        def f0():
            if st == 56: a(f"s_lshl_b32 s57, s{sKH}, 19")
            if st == 64: a(f"s_mov_b32 s57, {16*65536}")
            a(f"s_add_u32 m0, s56, {ldsoff}"); a("s_nop 0")
            a.vm(f"buffer_load_dwordx4 v{V2DMA+2*shared}, {sr(buf)}, s57 offen lds")
        def f1():
            a.vm(f"buffer_load_dwordx4 v{V2DMA+2*shared+1}, {sr(buf)}, s57 offen offset:1024 lds", f"b{st}")
            a("s_add_u32 s57, s57, 65536")
        return [f0, f1]
    def A2reg(st, t): return (st % AR)*8 + 4*t
    def g2_aload(st):
        def f0():
            if st == 56: a(f"s_mul_i32 s44, s{sKH}, {48*8192}"); a(f"s_add_u32 s58, s58, {56*8192}"); a("s_sub_u32 s58, s58, s44")
            if st == 64: a(f"s_lshl_b32 s44, s{sKH}, 16"); a(f"s_add_u32 s58, s58, {8*8192}"); a("s_sub_u32 s58, s58, s44")
            a.vm(f"buffer_load_dwordx4 {ar(A2reg(st,0))}, v{V2A}, {sr(S_WS)}, s58 offen sc1", f"a{st}")
            if st >= NMAIN: a("s_add_u32 s58, s58, 8192")
        def f1():
            a.vm(f"buffer_load_dwordx4 {ar(A2reg(st,1))}, v{V2A+1}, {sr(S_WS)}, s58 offen sc1", f"a{st}")
            a("s_add_u32 s58, s58, 8192")
        return [f0, f1] if st < NMAIN else [f0]
    KINDS = {"full": [(0,0,None),(0,1,None),(1,0,None),(1,1,None)],
             "causal": [(0,0,"L"),(1,0,None),(1,1,"L")],
             "upper": [(0,0,"U"),(0,1,None),(1,1,"U")]}
    units = []
    for p in range(10):
        for qp in range(2):
            rel = p - qp
            if 0 <= rel <= 8: units.append((p, qp, "upper" if rel == 0 else "causal" if rel == 8 else "full"))
    def rdK(p, tag):
        for k in range(2): a.ds(f"ds_read_b128 {ar(KA+(p&1)*8+4*k)}, v{VK} offset:{p*2048+k*1024}", f"{tag}K{p}")
    def rdV(p):
        for j in range(2): a.ds(f"ds_read_b128 {ar(VA+(p%3)*8+4*j)}, v{VV} offset:{p*2048+j*1024}", f"V{p}")
    def reset_at(p, regs, src):
        if p in (2, 4, 6, 8):
            sk = a.lab("Lrs")
            a(f"s_cmp_lg_u32 s{sPSTAR}, {p}"); a(f"s_cbranch_scc1 {sk}")
            for r in regs: a(f"v_mov_b32 v{r}, {src}")
            a.label(sk)
    side = [x for st in range(2*NS2) for x in g2_dma(st)]
    def side_pop(n=1):
        for _ in range(n):
            if side: side.pop(0)()
    tiles = [(p, qp, q, k, mt) for (p, qp, kind) in units for (q, k, mt) in KINDS[kind]]
    rdK(0, "a")
    LAG = 3
    for i in range(len(tiles) + LAG):
        if i < len(tiles):
            p, qp, q, k, mt = tiles[i]
            if i == 0 or tiles[i-1][0] != p:
                a.wait(f"aK{p}")
                if p+1 < 10: pend = p+1
                else: pend = None
            c = "0" if mt is None else vr(BL if mt == "L" else BU)
            a(f"{MF} {vr(S+(i%8)*4)}, {ar(KA+(p&1)*8+4*k)}, {vr(Q+4*(2*qp+q))}, {c}")
            if pend is not None: rdK(pend, "a"); pend = None
            if i % 4 == 2: side_pop()
        j = i - LAG
        if j >= 0:
            p, qp, q, k, mt = tiles[j]
            if j == 0 or tiles[j-1][0] != p: reset_at(p, range(M, M+4), f"v{TT+2}")
            s = S+(j%8)*4; m = M+2*qp+q
            a(f"v_max3_f32 v{m}, v{s}, v{s+1}, v{m}"); a(f"v_max3_f32 v{m}, v{s+2}, v{s+3}, v{m}")
    rdK(0, "b"); rdK(1, "b"); rdV(0)
    poll_issue(a, VP512, 59, EV_H, "ph")
    rowgroup_reduce(a, [M, M+1, M+2, M+3], [TT+8, TT+9, TT+10, TT+11], "v_max_f32")
    for q in range(4):
        for r in range(4): a(f"v_sub_f32 v{C+4*q+r}, 0, v{M+q}")
    a.stamp()
    def X(u):
        p, qp, kind = units[u]; out = []
        pre = []
        if kind != "full":
            B = BL if kind == "causal" else BU
            for q in range(2):
                for r in range(4): pre.append(f"v_add_f32 v{CD+8*(u&1)+4*q+r}, v{B+r}, v{C+4*(2*qp+q)+r}")
        for (q, k, mt) in KINDS[kind]:
            c = vr(C+4*(2*qp+q)) if mt is None else vr(CD+8*(u&1)+4*q)
            out.append(f"{MF} {vr(S+16*(u&1)+(q*2+k)*4)}, {ar(KA+(p&1)*8+4*k)}, {vr(Q+4*(2*qp+q))}, {c}")
        return pre, out
    def Y(u):
        p, qp, kind = units[u]; have = {(q, k) for (q, k, mt) in KINDS[kind]}; out = []
        for q in range(2):
            for k in range(2):
                s = S+16*(u&1)+(q*2+k)*4; d = P+8*(u&1)+4*q+2*k
                if (q, k) in have:
                    out += [f"v_exp_f32 v{s+r}, v{s+r}" for r in range(4)]
                    out += [f"v_cvt_pk_bf16_f32 v{d}, v{s}, v{s+1}", f"v_cvt_pk_bf16_f32 v{d+1}, v{s+2}, v{s+3}"]
                else: out += [f"v_mov_b32 v{d}, 0", f"v_mov_b32 v{d+1}, 0"]
        return out
    def Z(u):
        p, qp, kind = units[u]; out = []
        first = kind == "upper"
        for q in range(2):
            qq = 2*qp+q; pb = vr(P+8*(u&1)+4*q)
            for j in range(2):
                o = vr(O+(qq*2+j)*4); out.append(f"{MF} {o}, {ar(VA+(p%3)*8+4*j)}, {pb}, {'0' if first else o}")
            l = vr(Lr+4*qq); out.append(f"{MF} {l}, {ar(ONES)}, {pb}, {'0' if first else l}")
        return out
    NU = len(units)
    pre, xs = X(0)
    for x in pre: a(x)
    a.wait("bK0")
    for x in xs: a(x)
    PH_CHECK = 6
    for u in range(NU+1):
        ys = Y(u) if u < NU else []
        mm = []
        if u+1 < NU:
            pre, xs = X(u+1)
            for x in pre: a(x)
            a.wait(f"bK{units[u+1][0]}")
            mm += xs
        zs = []
        if u >= 1:
            pz = units[u-1][0]
            zs = Z(u-1)
        if u+1 < NU and units[u+1][0] != units[u][0]:
            p = units[u+1][0]
            kq = (lambda p=p: (rdK(p+1, "b") if p+1 < 10 else None, rdV(p)))
        else: kq = None
        out = []
        nm = len(mm) + len(zs); yi = 0
        per = len(ys)/max(1, nm)
        seq = mm + zs
        for i, m in enumerate(seq):
            if i == len(mm) and zs:
                a.wait(f"V{pz}")
                if u-2 < 0 or units[u-2][0] != pz: reset_at(pz, list(range(O, O+32)) + list(range(Lr, Lr+16)), "0")
            a(m)
            if i == 0 and kq: kq()
            if i in (2, 6): side_pop()
            tgt = int(round((i+1)*per))
            while yi < tgt: a(ys[yi]); yi += 1
        while yi < len(ys): a(ys[yi]); yi += 1
        if u == PH_CHECK:
            side_pop(99)
            poll_check(a, VP512, 59, EV_H, "ph")
            side += [x for st in range(Cfg.a_prefill) for x in g2_aload(st)]
        if u > PH_CHECK: side_pop(2)
    for qq in range(4): a(f"v_rcp_f32 v{TT+8+qq}, v{Lr+4*qq}")
    for qq in range(4):
        o = O+qq*8
        for i in range(8): a(f"v_mul_f32 v{o+i}, v{o+i}, v{TT+8+qq}")
        for i in range(4): a(f"v_cvt_pk_bf16_f32 v{o+i}, v{o+2*i}, v{o+2*i+1}")
        a.vm(f"buffer_store_dwordx4 {vr(o)}, v{VL16}, {sr(S_WS)}, s54 offen offset:{qq*1024} sc1", "o")
    side_pop(99)
    a.stamp()
    V2R = 208
    a(f"v_lshrrev_b32 v{T}, 2, v{L}")
    a(f"v_and_b32 v{T+1}, 3, v{L}"); a(f"v_lshlrev_b32 v{T+1}, 3, v{T+1}"); a(f"v_lshl_add_u32 v{T+1}, v{T}, 8, v{T+1}")
    a(f"v_add_u32 v{T+1}, {RING2}, v{T+1}"); a(f"v_and_b32 v{T}, 7, v{T}")
    for c in range(8):
        a(f"v_xor_b32 v{T+2}, {c}, v{T}"); a(f"v_lshl_add_u32 v{V2R+c}, v{T+2}, 5, v{T+1}"); a(f"v_add_u32 v{V2R+8+c}, {3*STG2}, v{V2R+c}")
    def B2reg(st, c): return 192 + (st & 1)*32 + 4*c
    def acc2(t, c): return (t*8 + c)*4
    def g2_reads(st):
        k = st % (2*NS2); out = []
        for c in range(8):
            for h in range(2):
                out.append(lambda c=c, h=h: a.ds(f"ds_read_b64_tr_b16 {ar(B2reg(st,c)+2*h,2)}, v{V2R+8*(k//6)+c} offset:{(k%6)*8192+h*4096}", f"r{st}_{c}"))
        return out
    a(f"s_lshl_b32 s44, s{sRT}, 3"); a(f"s_add_u32 s44, s44, s{sCT}"); a("s_lshl_b32 s44, s44, 1"); a(f"s_add_u32 s44, s44, s{sKH}")
    a("s_lshl_b32 s44, s44, 2"); a("s_add_u32 s44, s44, s3"); a("s_xor_b32 s45, s44, 4")
    a("s_lshl_b32 s50, s44, 13"); a(f"s_add_u32 s50, s50, {WS_EX}"); a("s_lshl_b32 s51, s45, 13"); a(f"s_add_u32 s51, s51, {WS_EX}")
    a(f"s_lshl_b32 s{sMYFL2}, s44, 7"); a(f"s_add_u32 s{sMYFL2}, s{sMYFL2}, {WS_FL2}"); a("s_lshl_b32 s52, s45, 7"); a(f"s_add_u32 s52, s52, {WS_FL2}")
    a(f"s_lshl_b32 s44, s{sRT}, 3"); a("s_lshl_b32 s45, s3, 1"); a("s_add_u32 s44, s44, s45"); a(f"s_add_u32 s44, s44, s{sKH}")
    a("s_lshl_b32 s53, s44, 15"); a(f"s_lshl_b32 s45, s{sCT}, 8"); a("s_add_u32 s53, s53, s45")
    VO = T+5
    a(f"v_and_b32 v{VO}, 15, v{L}"); a(f"v_lshlrev_b32 v{VO}, 11, v{VO}"); a(f"v_bfe_u32 v{T+2}, v{L}, 4, 1"); a(f"v_lshl_add_u32 v{VO}, v{T+2}, 5, v{VO}")
    a(f"v_lshrrev_b32 v{T+2}, 5, v{L}"); a(f"v_lshl_add_u32 v{VO}, v{T+2}, 4, v{VO}")
    a.wait("b1"); a("s_barrier")
    for x in g2_reads(0): x()
    XR, RX = 64, 80
    nextA = Cfg.a_prefill
    for st in range(NSTEP):
        main = st < NMAIN
        ms = []
        for c in range(8):
            for t in range(2 if main else 1):
                d = vr(acc2(t, c)); cin = "0" if st == 0 else d
                m = f"{MF} {d}, {ar(B2reg(st,c))}, {ar(A2reg(st,t))}, {cin}"
                if t == 0: ms.append(lambda m=m, c=c: (a.wait(f"r{st}_{c}", ds_max=8), a(m)))
                else: ms.append(m)
        nm = len(ms)
        fill = {}
        ld = []
        if st % 2 == 1:
            sg = (st+1)//2
            if st+1 < NSTEP:
                fill[-1] = [lambda: a.wait(f"b{st+2}"), "s_barrier"]
        tgt = st + 9
        if st >= 3 and tgt < NSTEP: ld += g2_dma(tgt)
        if st == 4: ld.insert(0, lambda: (a.wait("o"), flag_store(a, sMYFL, EV_O)))
        if st == 26: ld.append(lambda: poll_issue(a, VP512, 59, EV_O, "po"))
        if st == 30: fill.setdefault(-1, []).append(lambda: poll_check(a, VP512, 59, EV_O, "po"))
        na = 0
        while nextA < NSTEP and nextA <= st + AR - 1 and na < Cfg.a_per_step and (nextA < 56 or st >= 30) and nextA <= st + Cfg.a_dist:
            ld += g2_aload(nextA); nextA += 1; na += 1
        if st in (65, 66):
            for c in range(4*(st-65), 4*(st-65)+4):
                def f(c=c):
                    if c == 4: a("s_add_u32 s50, s50, 4096")
                    a.vm(f"buffer_store_dwordx4 {vr(acc2(1,c))}, v{VL16}, {sr(S_WS)}, s50 offen offset:{(c&3)*1024} sc1", "ex")
                ld.append(f)
        if st == 70: ld.insert(0, lambda: (a.wait("ex"), flag_store(a, sMYFL2, 0)))
        if st == 72:
            for k in range(4): ld.append(lambda k=k: a.vm(f"buffer_load_dwordx4 {vr(XR+4*k)}, v{VO}, {sr(S_X)}, s53 offen offset:{64*k}", "xr"))
        if st == 75: ld.append(lambda: poll_issue(a, T+4, 52, 0, "px"))
        if st == 78:
            def f():
                poll_check(a, T+4, 52, 0, "px")
                for c in range(8):
                    if c == 4: a("s_add_u32 s51, s51, 4096")
                    a.vm(f"buffer_load_dwordx4 {vr(RX+4*c)}, v{VL16}, {sr(S_WS)}, s51 offen offset:{(c&3)*1024} sc1", f"rx{c}")
            fill.setdefault(-1, []).append(f)
        fill.setdefault(-1, []).append(lambda st=st: a.wait(f"a{st}"))
        if st+1 < NSTEP: spread(fill, g2_reads(st+1), 0, nm)
        if ld: spread(fill, ld, 0, nm)
        merge(a, ms, fill)
        if st == NMAIN-1: a.stamp()
    a.stamp()
    for k in range(4):
        a.wait(f"rx{2*k+1}")
        c0, c1 = acc2(0, 2*k), acc2(0, 2*k+1)
        for i in range(8): a(f"v_add_f32 v{c0+i}, v{c0+i}, v{RX+8*k+i}")
        for r in range(4): a(f"v_permlane16_swap_b32 v{c0+r}, v{c1+r}")
        for d in range(4):
            x = XR+4*k+d
            a(f"v_lshlrev_b32 v{T}, 16, v{x}"); a(f"v_and_b32 v{T+1}, 0xffff0000, v{x}")
            a(f"v_add_f32 v{T}, v{T}, v{c0+2*d}"); a(f"v_add_f32 v{T+1}, v{T+1}, v{c0+2*d+1}")
            a(f"v_cvt_pk_bf16_f32 v{x}, v{T}, v{T+1}")
        a.vm(f"buffer_store_dwordx4 {vr(XR+4*k)}, v{VO}, {sr(S_OUT)}, s53 offen offset:{64*k}")
    if Cfg.probe:
        a.stamp(); a.wait_all(vm=True); a.stamp()
        i = Cfg.probe; e = a.nst - 1
        a(f"s_sub_u32 s44, s{62+2*i}, s{62+2*Cfg.probe0}"); a("s_mul_i32 s44, s44, 10"); a(f"s_add_u32 s44, s44, s{62+2*e}")
        a.label("Lprobe")
        a("s_memrealtime s[46:47]"); a("s_waitcnt lgkmcnt(0)"); a("s_sub_u32 s45, s46, s44"); a("s_cmp_lt_i32 s45, 0"); a("s_cbranch_scc1 Lprobe")
    elif Cfg.stamps:
        a.stamp(); a.wait_all(vm=True); a.stamp()
        srd(a, 44, 0, 256*MB)
        a("s_lshl_b32 s48, s2, 2"); a("s_add_u32 s48, s48, s3"); a("s_lshl_b32 s48, s48, 8"); a(f"s_add_u32 s48, s48, {200*MB}")
        a("s_mov_b64 exec, 1"); a("v_mov_b32 v0, 0")
        for i in range(a.nst):
            a(f"v_mov_b32 v4, s{62+2*i}"); a(f"v_mov_b32 v5, s{63+2*i}")
            a(f"buffer_store_dwordx2 v[4:5], v0, s[44:47], s48 offen offset:{8*i}"); a("s_waitcnt vmcnt(0)")
        print("stamps:", a.nst, file=sys.stderr)
    a.label("Lend")
    a("s_endpgm")
    a.label("Lcode_end")
    return a

def pf_w2(a, half):
    ops = []
    if half == 0:
        def f():
            a("s_lshl_b32 s44, s2, 2"); a("s_add_u32 s44, s44, s3"); a(f"s_mul_i32 s45, s44, {56*128}")
            a(f"v_lshlrev_b32 v{VT}, 7, v{VLANE}")
            a("s_mov_b32 exec_hi, 0xffffff"); a.vm(f"buffer_load_dword v{VT+1}, v{VT}, {sr(S_W2)}, s45 offen"); a("s_mov_b32 exec_hi, -1")
        ops.append(f)
        def g():
            a(f"s_lshl_b32 s45, s44, 11")
            a("s_mov_b64 exec, 0xffff"); a.vm(f"buffer_load_dword v{VT+2}, v{VT}, {sr(S_WO)}, s45 offen"); a("s_mov_b64 exec, -1")
        ops.append(g)
    return ops

Cfg.probe = 0
Cfg.probe0 = 0
Cfg.a_prefill = 12
Cfg.a_per_step = 2
Cfg.a_dist = 12

def text_size(src):
    import subprocess, tempfile, os, re
    d = tempfile.mkdtemp()
    open(d + "/k.s", "w").write(src)
    subprocess.run(["clang", "-x", "assembler", "-target", "amdgcn-amd-amdhsa", "-mcpu=gfx950", "-c", d + "/k.s", "-o", d + "/k.o"], check=True)
    o = subprocess.run(["llvm-objdump", "-h", d + "/k.o"], capture_output=True, text=True).stdout
    return int(re.search(r"\.text\s+([0-9a-f]+)", o).group(1), 16)

def build():
    a = gen()
    lines, n = pad_hazards_fast(a.L)
    hdr = [f"; @launch grid=(256,1,1) block=(256,1,1) lds={LDS_TOTAL}", '.amdgcn_target "amdgcn-amd-amdhsa--gfx950"']
    src = "\n".join(hdr + lines) + "\n" + kernel_desc(NAME, 512, 256)
    size = text_size(src.replace("CODE_BYTES", "0x1000"))
    print(len(lines), "lines,", n, "pads,", size, "bytes", file=sys.stderr)
    return src.replace("CODE_BYTES", str(size - 128))

if __name__ == "__main__":
    out = sys.argv[1] if len(sys.argv) > 1 else "parallel_sum__sliding_block__dense_activation_relu__prompt.s"
    for kv in sys.argv[2:]:
        k, v = kv.split("="); setattr(Cfg, k, int(v))
    open(out, "w").write(build())
```
